```python
import torch

def _softmax(x, axis=-1):
    return torch.softmax(x, dim=axis)
def _gelu(x):
    return torch.nn.functional.gelu(x, approximate="tanh")
def _silu(x):
    return torch.nn.functional.silu(x)
def _sigmoid(x):
    return torch.sigmoid(x)
def _layernorm(x, axis=-1, eps=1e-5):
    m = x.mean(dim=axis, keepdim=True)
    v = x.var(dim=axis, keepdim=True, unbiased=False)
    return (x - m) / torch.sqrt(v + eps)
def _scatter_add(tgt, idx, src, axis=0):
    return tgt.clone().index_add_(axis, idx, src)
def _segment_sum(src, seg, n):
    out = torch.zeros((n,) + src.shape[1:], dtype=src.dtype)
    return out.index_add_(0, seg, src)
def _pad(x, pw):
    flat = tuple(v for pair in reversed(pw) for v in pair)
    return torch.nn.functional.pad(x, flat)

kernel_name = 'concat_heads__mha_block_cached__gqa_block_cached__near_ridge'

def setup_inputs():

    _w = (lambda a: (lambda t: t.to(torch.bfloat16) if t.is_floating_point() else t)(torch.as_tensor(a)))
    def _A_setup():
        B, Sq, D = 16, 112, 512
        H, Sk, Dh = 32, 512, 128
        return {
            "x": _w((lambda *s: torch.randn(*s, dtype=torch.bfloat16) * 0.8)(B, Sq, D)),
            "k_cache": _w((lambda *s: torch.randn(*s, dtype=torch.bfloat16) * 0.8)(B, H, Sk, Dh)),
            "v_cache": _w((lambda *s: torch.randn(*s, dtype=torch.bfloat16) * 0.05)(B, H, Sk, Dh)),
            "wq": _w((lambda *s: torch.randn(*s, dtype=torch.bfloat16) * 0.8)(D, H * Dh) * (D ** -0.5)),
            "wo": _w((lambda *s: torch.randn(*s, dtype=torch.bfloat16) * 0.05)(H * Dh, D) * ((H * Dh) ** -0.5)),
        }
    _A_in = _A_setup()

    def _B_setup():
        B, Sq, D = 16, 112, 512
        Hq, Hkv, Sk, Dh = 32, 32, 512, 128
        assert Hq % Hkv == 0, (Hq, Hkv)
        return {
            "x": _w((lambda *s: torch.randn(*s, dtype=torch.bfloat16) * 0.8)(B, Sq, D)),
            "k_cache": _w((lambda *s: torch.randn(*s, dtype=torch.bfloat16) * 0.8)(B, Hkv, Sk, Dh)),
            "v_cache": _w((lambda *s: torch.randn(*s, dtype=torch.bfloat16) * 0.05)(B, Hkv, Sk, Dh)),
            "wq": _w((lambda *s: torch.randn(*s, dtype=torch.bfloat16) * 0.8)(D, Hq * Dh) * (D ** -0.5)),
            "wo": _w((lambda *s: torch.randn(*s, dtype=torch.bfloat16) * 0.05)(Hq * Dh, D) * ((Hq * Dh) ** -0.5)),
        }
    _B_in = _B_setup()

    return {
        "A_x": _A_in["x"],
        "A_k_cache": _A_in["k_cache"],
        "A_v_cache": _A_in["v_cache"],
        "A_wq": _A_in["wq"],
        "A_wo": _A_in["wo"],
        "B_x": _B_in["x"],
        "B_k_cache": _B_in["k_cache"],
        "B_v_cache": _B_in["v_cache"],
        "B_wq": _B_in["wq"],
        "B_wo": _B_in["wo"],
    }

def reference(A_x, A_k_cache, A_v_cache, A_wq, A_wo, B_x, B_k_cache, B_v_cache, B_wq, B_wo):
    def _A_ref(x, k_cache, v_cache, wq, wo):
        B, Sq, D = x.shape
        H, Dh = 32, 128
        q = (lambda x, *d: x.permute(*d))((x @ wq).reshape(B, Sq, H, Dh), 0, 2, 1, 3)
        scores = torch.einsum("bhqd,bhkd->bhqk", q, k_cache) * (Dh ** -0.5)
        p = _softmax(scores, axis=-1)
        o = torch.einsum("bhqk,bhkd->bhqd", p, v_cache)
        return (lambda x, *d: x.permute(*d))(o, 0, 2, 1, 3).reshape(B, Sq, H * Dh) @ wo

    def _B_ref(x, k_cache, v_cache, wq, wo):
        B, Sq, D = x.shape
        Hq, Dh = 32, 128
        Hkv = k_cache.shape[1]
        rep = Hq // Hkv
        q = (lambda x, *d: x.permute(*d))((x @ wq).reshape(B, Sq, Hq, Dh), 0, 2, 1, 3)
        k = (lambda x, n, axis: torch.repeat_interleave(x, n, dim=axis))(k_cache, rep, axis=1)
        v = (lambda x, n, axis: torch.repeat_interleave(x, n, dim=axis))(v_cache, rep, axis=1)
        scores = torch.einsum("bhqd,bhkd->bhqk", q, k) * (Dh ** -0.5)
        p = _softmax(scores, axis=-1)
        o = torch.einsum("bhqk,bhkd->bhqd", p, v)
        return (lambda x, *d: x.permute(*d))(o, 0, 2, 1, 3).reshape(B, Sq, Hq * Dh) @ wo

    a = _A_ref(A_x, A_k_cache, A_v_cache, A_wq, A_wo)
    b = _B_ref(B_x, B_k_cache, B_v_cache, B_wq, B_wo)
    return torch.concatenate([a, b], axis=-1)
```

```python
import re

def vr(a, n=1):
    return f"v{a}" if n == 1 else f"v[{a}:{a+n-1}]"
def sr(a, n=1):
    return f"s{a}" if n == 1 else f"s[{a}:{a+n-1}]"
def V(a, n=1):
    return {("v", i) for i in range(a, a + n)}
def S(a, n=1):
    return {("s", i) for i in range(a, a + n)}
VCC = {("s", "vcc")}
M0 = {("s", "m0")}

class Ins:
    __slots__ = ("txt", "kind", "rd", "wr", "C", "AB", "states", "sub", "cstates")
    def __init__(s, txt, kind, rd=(), wr=(), C=(), AB=(), states=1, sub=""):
        s.txt, s.kind, s.rd, s.wr, s.C, s.AB, s.states, s.sub = txt, kind, set(rd), set(wr), set(C), set(AB), states, sub
        s.cstates = False

def need(p, n):
    r = 0
    pv = p.kind in ("valu", "trans")
    nv = n.kind in ("valu", "trans")
    if pv and n.kind == "mfma" and (p.wr & n.rd): r = max(r, 2)
    if p.kind == "mfma":
        big = 12 if p.sub == "p8" else 8
        if n.kind == "mfma":
            if n.C & p.wr and not (n.C == p.wr and n.sub == p.sub): r = max(r, 10 if p.sub == "p8" else 6)
            if n.AB & p.wr: r = max(r, big)
        elif nv or n.kind in ("ds", "vmem"):
            if (n.rd | n.wr) & p.wr: r = max(r, big)
        if nv and (n.wr & p.C): r = max(r, 7 if p.sub == "p8" else 3)
    if p.kind == "trans" and n.kind in ("valu", "ds", "vmem") and (p.wr & n.rd): r = max(r, 1)
    if pv and n.sub == "permlane" and (p.wr & n.rd): r = max(r, 2)
    if pv and n.sub == "readlane" and (p.wr & n.rd): r = max(r, 1)
    if pv:
        sw = {x for x in p.wr if x[0] == "s"}
        if sw & n.rd:
            if nv: r = max(r, 2)
            if n.kind == "vmem": r = max(r, 5)
            if n.kind == "salu": r = max(r, 1)
    if p.kind == "vmem" and p.sub == "store4" and (p.rd & n.wr):
        r = max(r, 2 if nv else 1)
    if p.kind == "salu" and (p.wr & M0) and n.sub == "dma": r = max(r, 1)
    return r

class Builder:
    def __init__(s):
        s.lines = []
        s.hist = []
        s.ds = []
        s.vm = []
        s.count = {}
        s.cond = 0
    def raw(s, txt):
        s.lines.append(txt)
    def comment(s, t):
        s.lines.append("; " + t)
    def label(s, name, reset=False):
        s.lines.append(name + ":")
    def _push(s, ins):
        s.lines.append("  " + ins.txt)
        if s.cond: ins.cstates = True
        s.hist.append(ins)
        if len(s.hist) > 40: s.hist.pop(0)
        s.count[ins.kind] = s.count.get(ins.kind, 0) + 1
    def emit(s, ins):
        touch = ins.rd | ins.wr
        k = -1
        for i, d in enumerate(s.ds):
            if d & touch: k = i
        if k >= 0:
            n = len(s.ds) - 1 - k
            s.wait(lgkm=min(n, 15))
        dist = 0; nop = 0
        for p in reversed(s.hist):
            r = need(p, ins)
            if r - dist > nop: nop = r - dist
            dist += p.states
            if dist > 24: break
        while nop > 0:
            c = min(nop, 16)
            s._push(Ins(f"s_nop {c-1}", "other", states=c))
            nop -= c
        s._push(ins)
        if ins.kind == "ds":
            s.ds.append(set(ins.wr))
            assert len(s.ds) <= 64
    def wait(s, vm=None, lgkm=None):
        t = []
        if vm is not None:
            t.append(f"vmcnt({vm})")
            s.vm = s.vm[len(s.vm) - vm:] if vm > 0 else []
        if lgkm is not None:
            t.append(f"lgkmcnt({lgkm})")
            s.ds = s.ds[len(s.ds) - lgkm:] if lgkm > 0 else []
        s._push(Ins("s_waitcnt " + " ".join(t), "other"))
    def wait_tag(s, tag):
        k = -1
        for i, t in enumerate(s.vm):
            if t == tag: k = i
        if k >= 0:
            s.wait(vm=len(s.vm) - 1 - k)
    def cond_begin(s):
        s.cond += 1
    def cond_end(s):
        s.cond -= 1
        if s.cond == 0:
            for p in s.hist:
                if p.cstates: p.states = 0
    def nop(s, n):
        s._push(Ins(f"s_nop {n-1}", "other", states=n))
    def barrier(s):
        s._push(Ins("s_barrier", "other"))
    def other(s, txt):
        s._push(Ins(txt, "other"))
    @staticmethod
    def regs(op):
        op = op.strip().lstrip("-")
        m = re.fullmatch(r"([vs])(\d+)", op)
        if m: return {(m.group(1), int(m.group(2)))}
        m = re.fullmatch(r"([vs])\[(\d+):(\d+)\]", op)
        if m: return {(m.group(1), i) for i in range(int(m.group(2)), int(m.group(3)) + 1)}
        if op == "vcc": return set(VCC)
        if op == "m0": return set(M0)
        return set()
    def s_(s, op, dst, *src):
        rd = set()
        for x in src: rd |= s.regs(str(x))
        ops = ", ".join([str(dst)] + [str(x) for x in src])
        if op.startswith("s_cmp") or op.startswith("s_bitcmp"):
            s.emit(Ins(f"{op} {ops}", "salu", rd | s.regs(str(dst)), ()))
        else:
            s.emit(Ins(f"{op} {ops}", "salu", rd, s.regs(str(dst))))
    def v_(s, op, dst, *src):
        rd = set()
        for x in src: rd |= s.regs(str(x))
        wr = s.regs(str(dst))
        kind = "trans" if op in ("v_exp_f32", "v_rcp_f32", "v_log_f32", "v_rsq_f32") else "valu"
        sub = ""
        if op.startswith("v_permlane"):
            sub = "permlane"; rd |= wr; wr = set(rd)
        if op.startswith("v_readfirstlane") or op.startswith("v_readlane"): sub = "readlane"
        if op.startswith("v_fmac"): rd |= wr
        ops = ", ".join([str(dst)] + [str(x) for x in src])
        s.emit(Ins(f"{op} {ops}", kind, rd, wr, sub=sub))
    def mfma32(s, d, a, b, c):
        cs = vr(c, 16) if c is not None else "0"
        C = V(c, 16) if c is not None else set()
        s.emit(Ins(f"v_mfma_f32_32x32x16_bf16 {vr(d,16)}, {vr(a,4)}, {vr(b,4)}, {cs}", "mfma",
                   V(a, 4) | V(b, 4) | C, V(d, 16), C=C, AB=V(a, 4) | V(b, 4), sub="p8"))
    def ds_read128(s, d, addr, off):
        assert 0 <= off < 65536
        s.emit(Ins(f"ds_read_b128 {vr(d,4)}, {vr(addr)} offset:{off}", "ds", V(addr), V(d, 4)))
    def ds_tr(s, d, addr, off):
        assert 0 <= off < 65536
        s.emit(Ins(f"ds_read_b64_tr_b16 {vr(d,2)}, {vr(addr)} offset:{off}", "ds", V(addr), V(d, 2)))
    def ds_write128(s, addr, d, off):
        assert 0 <= off < 65536
        s.emit(Ins(f"ds_write_b128 {vr(addr)}, {vr(d,4)} offset:{off}", "ds", V(addr) | V(d, 4), ()))
    def dma(s, voff, srd, soff, imm=0, pol="", tag=None):
        o = f" offset:{imm}" if imm else ""
        s.emit(Ins(f"buffer_load_dwordx4 {vr(voff)}, {sr(srd,4)}, {soff} offen{o}{pol} lds", "vmem",
                   V(voff) | S(srd, 4) | s.regs(str(soff)) | M0, (), sub="dma"))
        s.vm.append(tag)
    def load4(s, d, voff, srd, soff, imm=0, pol="", tag=None):
        o = f" offset:{imm}" if imm else ""
        s.emit(Ins(f"buffer_load_dwordx4 {vr(d,4)}, {vr(voff)}, {sr(srd,4)}, {soff} offen{o}{pol}", "vmem",
                   V(voff) | S(srd, 4) | s.regs(str(soff)), V(d, 4)))
        s.vm.append(tag)
    def load1(s, d, voff, srd, soff, imm=0, pol="", tag=None):
        o = f" offset:{imm}" if imm else ""
        s.emit(Ins(f"buffer_load_dword {vr(d)}, {vr(voff)}, {sr(srd,4)}, {soff} offen{o}{pol}", "vmem",
                   V(voff) | S(srd, 4) | s.regs(str(soff)), V(d)))
        s.vm.append(tag)
    def store4(s, d, voff, srd, soff, imm=0, pol="", tag=None):
        o = f" offset:{imm}" if imm else ""
        s.emit(Ins(f"buffer_store_dwordx4 {vr(d,4)}, {vr(voff)}, {sr(srd,4)}, {soff} offen{o}{pol}", "vmem",
                   V(d, 4) | V(voff) | S(srd, 4) | s.regs(str(soff)), (), sub="store4"))
        s.vm.append(tag)
    def store1(s, d, voff, srd, soff, imm=0, pol="", tag=None):
        o = f" offset:{imm}" if imm else ""
        s.emit(Ins(f"buffer_store_dword {vr(d)}, {vr(voff)}, {sr(srd,4)}, {soff} offen{o}{pol}", "vmem",
                   V(d) | V(voff) | S(srd, 4) | s.regs(str(soff)), ()))
        s.vm.append(tag)
    def atomic_add(s, d, voff, srd, soff, pol=""):
        s.emit(Ins(f"buffer_atomic_add {vr(d)}, {vr(voff)}, {sr(srd,4)}, {soff} offen{pol}", "vmem",
                   V(d) | V(voff) | S(srd, 4) | s.regs(str(soff)), ()))
        s.vm.append(None)
    def branch(s, op, target):
        rd = VCC if "vcc" in op else ()
        s.emit(Ins(f"{op} {target}", "salu" if "vcc" in op else "other", rd, ()))
    def text(s):
        return "\n".join(s.lines) + "\n"
```

```python
import sys, struct, math
from asmb import *
NAME = "concat_heads__mha_block_cached__gqa_block_cached__near_ridge"

KVS = 32768
LWQ = 98304
LWO = 131072
BIG = 0x40000000

sK, sV, sWQ, sWO, sX, sO, sOUT, sDBG = 8, 12, 16, 20, 24, 28, 32, 36
sW, sJ, sG, sRho, sI, sFn, sFc, sFr, sStart, sThr, sC = 40, 41, 42, 43, 44, 45, 46, 47, 48, 49, 50
sSlot, sKVg, sLd, sOo, sOo2, sP32, sM64, sFill, sT0, sT1, sT2, sT3, sWoff, sSpin = 51, 52, 53, 54, 55, 56, 57, 58, 59, 60, 61, 62, 63, 64
sGid = 65
def s(n): return f"s{n}"
def v(n): return f"v{n}"

vKa0, vKa1, vVa, vWa, vOo, vM, vL, vTa, vTb = 1, 2, 3, 4, 5, 6, 7, 8, 9
vE = 10
OACC, QF, S0, S1, P0, P1, OUTA, OF, AF = 16, 80, 112, 128, 144, 152, 160, 192, 224
hKo, hVo, hQo, hWo, hXo, hRa, hLin, hFlagA, hFlagP, hOne, hPoll, hXa = 1, 5, 6, 7, 8, 10, 11, 12, 13, 14, 15, 16
hT = 20
QACC, HAF, XF = 32, 96, 128

def f32hex(x): return "0x%08x" % struct.unpack("<I", struct.pack("<f", x))[0]

class Gen:
    def __init__(g, **opt):
        g.o = dict(prio=1, order="split", nocomp=False, kvpol=" nt", wpol="", opol=" sc1", thr=65536.0)
        g.o.update(opt)
        g.b = Builder()
        g.rare = []
        g.uid = 0
    def lab(g, p):
        g.uid += 1
        return f"L_{p}_{g.uid}"

    def skip_if(g, cmp, a, c, fn, name="skip"):
        b = g.b
        sk = g.lab(name)
        b.s_(cmp, a, c)
        b.branch("s_cbranch_scc1", sk)
        b.cond_begin(); fn(); b.cond_end()
        b.label(sk)

    def setup(g):
        b = g.b
        b.s_("s_cmp_ge_u32", "s2", 256)
        b.branch("s_cbranch_scc1", "L_end")
        b.other("s_load_dwordx4 s[80:83], s[0:1], 80")
        b.other("s_load_dwordx2 s[84:85], s[0:1], 96")
        b.s_("s_and_b32", "s3", "s2", 7)
        b.s_("s_lshr_b32", "s4", "s3", 2)
        b.s_("s_mul_i32", "s5", "s4", 40)
        b.s_("s_add_u32", "s0", "s0", "s5")
        b.s_("s_addc_u32", "s1", "s1", 0)
        b.other("s_load_dwordx8 s[68:75], s[0:1], 0")
        b.other("s_load_dwordx2 s[76:77], s[0:1], 32")
        b.v_("v_readfirstlane_b32", s(sW), "v0")
        b.s_("s_lshr_b32", "s6", "s2", 3)
        b.s_("s_lshr_b32", s(sG), "s6", 3)
        b.s_("s_and_b32", s(sJ), "s6", 7)
        b.s_("s_and_b32", "s7", "s3", 3)
        b.s_("s_lshl_b32", "s7", "s7", 2)
        b.s_("s_add_u32", "s7", "s7", s(sG))
        b.s_("s_lshr_b32", s(sW), s(sW), 6)
        b.s_("s_lshl_b32", s(sGid), "s4", 4)
        b.s_("s_add_u32", s(sGid), s(sGid), "s7")
        b.s_("s_lshl_b32", s(sStart), s(sG), 1)
        b.s_("s_mov_b32", s(sFn), s(sStart))
        b.s_("s_add_u32", s(sStart), s(sStart), s(sJ))
        b.s_("s_and_b32", s(sStart), s(sStart), 7)
        b.s_("s_mov_b32", s(sFc), 0)
        b.s_("s_mov_b32", s(sFr), 0)
        b.s_("s_mov_b32", s(sRho), 0)
        b.s_("s_mov_b32", s(sP32), KVS)
        b.s_("s_mov_b32", s(sM64), -2 * KVS)
        b.v_("v_and_b32", "v0", 63, "v0")
        b.wait(lgkm=0)
        def srd(d, p, off, total):
            b.s_("s_add_u32", s(d), s(p), off)
            b.s_("s_addc_u32", s(d + 1), s(p + 1), 0)
            b.s_("s_mov_b32", s(d + 3), "0x20000")
        b.s_("s_lshl_b32", s(sT0), "s7", 5)
        b.s_("s_add_u32", s(sT0), s(sT0), s(sJ))
        b.s_("s_lshl_b32", s(sT0), s(sT0), 17)
        srd(sK, 70, s(sT0), 0); b.s_("s_sub_u32", s(sK + 2), "0x4000000", s(sT0))
        srd(sV, 72, s(sT0), 0); b.s_("s_sub_u32", s(sV + 2), "0x4000000", s(sT0))
        b.s_("s_lshl_b32", s(sT0), s(sJ), 8)
        srd(sWQ, 74, s(sT0), 0); b.s_("s_sub_u32", s(sWQ + 2), "0x400000", s(sT0))
        b.s_("s_lshl_b32", s(sT0), s(sJ), 7)
        srd(sWO, 76, s(sT0), 0); b.s_("s_sub_u32", s(sWO + 2), "0x400000", s(sT0))
        b.s_("s_mul_i32", s(sT0), "s7", 114688)
        srd(sX, 68, s(sT0), 0); b.s_("s_mov_b32", s(sX + 2), 114688)
        b.s_("s_lshl_b32", s(sT0), s(sGid), 20)
        srd(sO, 84, s(sT0), 0); b.s_("s_mov_b32", s(sO + 2), "0x100000")
        b.s_("s_lshl_b32", s(sT1), "s4", 10)
        b.s_("s_lshl_b32", s(sT2), s(sJ), 7)
        b.s_("s_add_u32", s(sT1), s(sT1), s(sT2))
        b.s_("s_mul_i32", s(sT0), "s7", 229376)
        b.s_("s_add_u32", s(sT0), s(sT0), s(sT1))
        srd(sOUT, 80, s(sT0), 0); b.s_("s_sub_u32", s(sOUT + 2), 229376, s(sT1))
        srd(sDBG, 82, 0, 0); b.s_("s_mov_b32", s(sDBG + 2), 256)
        b.s_("s_cmp_ge_u32", s(sW), 4)
        b.branch("s_cbranch_scc1", "L_helper")

    def next_foreign(g, dst, cond=None):
        b = g.b
        b.s_("s_add_u32", s(dst), s(sJ), s(sFn))
        b.s_("s_add_u32", s(dst), s(dst), 1)
        b.s_("s_and_b32", s(dst), s(dst), 7)
        b.s_("s_lshl3_add_u32", s(dst), s(sFr), s(dst))
        inc = s(cond) if cond is not None else 1
        b.s_("s_add_u32", s(sFn), s(sFn), inc)
        b.s_("s_cmp_eq_u32", s(sFn), 7)
        b.s_("s_cselect_b32", s(sFn), 0, s(sFn))
        b.s_("s_add_u32", s(sFc), s(sFc), inc)
        b.s_("s_cmp_eq_u32", s(sFc), 7)
        b.s_("s_cselect_b32", s(sFc), 0, s(sFc))
        b.s_("s_addc_u32", s(sFr), s(sFr), 0)

    def lane_tr(g, dst, hmul, t0, t1):
        b = g.b
        b.v_("v_lshrrev_b32", v(dst), 5, "v0")
        b.v_("v_mul_u32_u24", v(dst), hmul, v(dst))
        b.v_("v_bfe_u32", v(t0), "v0", 2, 2)
        b.v_("v_lshl_add_u32", v(dst), v(t0), 6, v(dst))
        b.v_("v_bfe_u32", v(t0), "v0", 4, 1)
        b.v_("v_lshl_add_u32", v(dst), v(t0), 5, v(dst))
        b.v_("v_and_b32", v(t0), 1, "v0")
        b.v_("v_lshl_add_u32", v(dst), v(t0), 4, v(dst))
        b.v_("v_bfe_u32", v(t0), "v0", 1, 1)
        b.v_("v_lshl_add_u32", v(dst), v(t0), 3, v(dst))

    def mf_qk(g, tile):
        L = []
        D = S0 if tile == 0 else S1
        for st in range(8):
            off = tile * 8192 + (st >> 2) * 1024 + ((st >> 1) & 1) * 512
            L.append(dict(d=D, b=QF + 4 * st, c=None if st == 0 else D, rd=[("b128", vKa1 if st & 1 else vKa0, off)]))
        return L
    def mf_pv(g, tile, zero=False):
        L = []
        P = P0 if tile == 0 else P1
        for k2 in range(2):
            ks = tile * 2 + k2
            for t in range(4):
                base = 16384 + ks * 4096 + t * 256
                L.append(dict(d=OACC + 16 * t, b=P + 4 * k2, c=None if (zero and k2 == 0) else OACC + 16 * t,
                              rd=[("tr", vVa, base), ("tr", vVa, base + 2048)]))
        return L
    def mf_op(g, wa=vWa, of=OF, woff=0):
        L = []
        for ks in range(8):
            for nt in range(2):
                base = woff + ks * 2048 + nt * 256
                L.append(dict(d=OUTA + 16 * nt, b=of + 4 * ks, c=OUTA + 16 * nt,
                              rd=[("tr", wa, base), ("tr", wa, base + 512)]))
        return L
    def issue_rd(g, m, ring, af=AF):
        b = g.b
        a = af + 4 * ring
        for k, (kind, ad, off) in enumerate(m["rd"]):
            if kind == "b128": b.ds_read128(a, ad, off)
            else: b.ds_tr(a + 2 * k, ad, off)
    def issue_mf(g, m, ring, af=AF):
        g.b.mfma32(m["d"], af + 4 * ring, m["b"], m["c"])

    def softmax_ops(g, Sx, Px, first):
        b = g.b
        ops = []
        A = ops.append
        if first:
            A(lambda: b.v_("v_max3_f32", v(vE), v(Sx), v(Sx + 1), v(Sx + 2)))
            A(lambda: b.v_("v_max3_f32", v(vE + 1), v(Sx + 3), v(Sx + 4), v(Sx + 5)))
            A(lambda: b.v_("v_max3_f32", v(vE + 2), v(Sx + 6), v(Sx + 7), v(Sx + 8)))
            A(lambda: b.v_("v_max3_f32", v(vE + 3), v(Sx + 9), v(Sx + 10), v(Sx + 11)))
            A(lambda: b.v_("v_max3_f32", v(vE), v(vE), v(Sx + 12), v(Sx + 13)))
            A(lambda: b.v_("v_max3_f32", v(vE + 1), v(vE + 1), v(Sx + 14), v(Sx + 15)))
            A(lambda: b.v_("v_max3_f32", v(vE), v(vE), v(vE + 2), v(vE + 3)))
            A(lambda: b.v_("v_max_f32", v(vE), v(vE), v(vE + 1)))
            A(lambda: b.v_("v_mov_b32", v(vE + 1), v(vE)))
            A(lambda: b.v_("v_permlane32_swap_b32", v(vE), v(vE + 1)))
            A(lambda: b.v_("v_max_f32", v(vE), v(vE), v(vE + 1)))
            A(lambda: b.v_("v_mul_f32", v(vM), s(sC), v(vE)))
        def fma(r): A(lambda: b.v_("v_fma_f32", v(Sx + r), v(Sx + r), s(sC), "-" + v(vM)))
        fma(0); fma(1); fma(2); fma(3)
        ops += g.exp_ops(Sx, Px, fma)
        if first:
            A(lambda: b.v_("v_add_f32", v(vL), v(vTa), v(vTb)))
        else:
            def chk():
                r, k = g.lab("rare"), g.lab("back")
                b.v_("v_add_f32", v(vTa), v(vTa), v(vTb))
                b.v_("v_cmp_nge_f32", "vcc", s(sThr), v(vTa))
                b.branch("s_cbranch_vccnz", r)
                b.label(k)
                b.v_("v_add_f32", v(vL), v(vL), v(vTa))
                g.rare.append((r, k, Sx, Px))
            A(chk)
        return ops
    def exp_ops(g, Sx, Px, fma=None):
        b = g.b
        ops = []
        A = ops.append
        for p in range(8):
            e0 = vE + 2 * (p % 3); e1 = e0 + 1
            A(lambda p=p, e0=e0: b.v_("v_exp_f32", v(e0), v(Sx + 2 * p)))
            A(lambda p=p, e1=e1: b.v_("v_exp_f32", v(e1), v(Sx + 2 * p + 1)))
            if fma is not None and 2 * p + 4 < 16:
                for r in (2 * p + 4, 2 * p + 5):
                    A(lambda r=r: b.v_("v_fma_f32", v(Sx + r), v(Sx + r), s(sC), "-" + v(vM)))
            if p > 0:
                q = p - 1; f0 = vE + 2 * (q % 3); f1 = f0 + 1
                g._acc(A, q, f0, f1, Px)
        q = 7; f0 = vE + 2 * (q % 3)
        g._acc(A, q, f0, f0 + 1, Px)
        return ops
    def _acc(g, A, q, f0, f1, Px):
        b = g.b
        if q == 0:
            A(lambda: b.v_("v_mov_b32", v(vTa), v(f0)))
            A(lambda: b.v_("v_mov_b32", v(vTb), v(f1)))
        else:
            A(lambda: b.v_("v_add_f32", v(vTa), v(vTa), v(f0)))
            A(lambda: b.v_("v_add_f32", v(vTb), v(vTb), v(f1)))
        A(lambda: b.v_("v_cvt_pk_bf16_f32", v(Px + q), v(f0), v(f1)))

    def emit_rare(g):
        b = g.b
        for (r, k, Sx, Px) in g.rare:
            b.label(r)
            b.hist = []; b.ds = []
            b.nop(16)
            b.v_("v_max3_f32", v(vE), v(Sx), v(Sx + 1), v(Sx + 2))
            for i in range(3, 15, 2):
                b.v_("v_max3_f32", v(vE), v(vE), v(Sx + i), v(Sx + i + 1))
            b.v_("v_max3_f32", v(vE), v(vE), v(Sx + 15), 0)
            b.v_("v_mov_b32", v(vE + 1), v(vE))
            b.v_("v_permlane32_swap_b32", v(vE), v(vE + 1))
            b.v_("v_max_f32", v(vE), v(vE), v(vE + 1))
            b.v_("v_add_f32", v(vM), v(vM), v(vE))
            for i in range(16):
                b.v_("v_sub_f32", v(Sx + i), v(Sx + i), v(vE))
            b.v_("v_exp_f32", v(vE + 1), "-" + v(vE))
            b.v_("v_mul_f32", v(vL), v(vL), v(vE + 1))
            for i in range(64):
                b.v_("v_mul_f32", v(OACC + i), v(OACC + i), v(vE + 1))
            for op in g.exp_ops(Sx, Px): op()
            b.v_("v_add_f32", v(vTa), v(vTa), v(vTb))
            b.nop(2)
            b.branch("s_branch", k)
        g.rare = []

    def att_book(g):
        b = g.b
        ops = []
        def f1():
            b.s_("s_cmp_lt_u32", s(sI), 3)
            b.s_("s_cselect_b32", s(sT0), 2, 1)
            b.s_("s_cmp_eq_u32", s(sI), 7)
            b.s_("s_cselect_b32", s(sT0), 60, s(sT0))
            b.s_("s_cmp_ge_u32", s(sRho), s(sT0))
            b.s_("s_cselect_b32", s(sLd), 1, 0)
        def f2():
            g.next_foreign(sT1, sLd)
            b.s_("s_lshl_b32", s(sOo), s(sT1), 15)
            b.s_("s_add_u32", s(sOo), s(sOo), s(sWoff))
            b.s_("s_add_u32", s(sOo2), s(sOo), 4096)
        def f3():
            b.s_("s_add_u32", s(sSlot), s(sSlot), 1)
            b.s_("s_cmp_eq_u32", s(sSlot), 3)
            b.s_("s_cselect_b32", s(sT2), s(sM64), s(sP32))
            b.s_("s_cselect_b32", s(sSlot), 0, s(sSlot))
            b.s_("s_add_u32", s(sI), s(sI), 1)
        return f1, f2, f3

    def oload_group(g, k0, n, of=OF):
        b = g.b
        def f():
            sk = g.lab("nold")
            b.s_("s_cmp_eq_u32", s(sLd), 0)
            b.branch("s_cbranch_scc1", sk)
            b.cond_begin()
            for k in range(k0, k0 + n):
                b.load4(of + 4 * k, vOo, sO, s(sOo if k < 4 else sOo2), (k & 3) * 1024, g.o["opol"])
            b.cond_end()
            b.label(sk)
        return f

    def body(g, first, has_op):
        b = g.b
        own = g.mf_qk(0) + g.mf_qk(1) + (g.mf_op() if has_op else []) + g.mf_pv(0, zero=first) + g.mf_pv(1)
        N = len(own)
        pv0 = N - 16
        extra = {k: [] for k in range(N)}
        def spread(ops, lo, hi):
            n = hi - lo + 1
            for i, op in enumerate(ops):
                extra[lo + (i * n) // len(ops)].append(op)
        f1, f2, f3 = g.att_book()
        extra[7].append(f1); extra[8].append(f2); extra[9].append(f3)
        extra[9].append(lambda: b.v_("v_add_u32", v(vKa0), s(sT2), v(vKa0)))
        extra[9].append(lambda: b.v_("v_add_u32", v(vKa1), s(sT2), v(vKa1)))
        sm0 = g.softmax_ops(S0, P0, first)
        sm1 = g.softmax_ops(S1, P1, False)
        if has_op:
            spread(sm0, 10, 24)
            spread(sm1[:-1], 25, pv0 + 7)
        else:
            spread(sm0, 10, 15)
            spread(sm1[:-1], 17, pv0 + 7)
        extra[pv0 + 7].append(sm1[-1])
        for k in range(4):
            extra[pv0 + 2 * k].insert(0, g.oload_group(2 * k, 2))
        extra[N - 7].append(lambda: b.v_("v_add_u32", v(vVa), s(sT2), v(vVa)))
        extra[N - 7].append(lambda: b.v_("v_xor_b32", v(vWa), "0x4000", v(vWa)))
        if first:
            for k in range(7): g.issue_rd(own[k], k)
        else:
            carry = g.mf_pv(1)[-4:]
            for k in range(4): g.issue_rd(own[k], k)
            for c in range(4):
                g.issue_mf(carry[c], 4 + c)
                if c >= 1: g.issue_rd(own[3 + c], 3 + c)
        for k in range(N - 4):
            if has_op and not first and k == 16:
                b.wait(vm=0)
            g.issue_mf(own[k], k % 8)
            if k + 7 < N: g.issue_rd(own[k + 7], (k + 7) % 8)
            for op in extra[k]: op()
        if first: b.wait(vm=0, lgkm=0)
        else: b.wait(lgkm=0)

    def flush_carry(g):
        carry = g.mf_pv(1)[-4:]
        for c in range(4): g.issue_mf(carry[c], 4 + c)

    def finalize(g):
        b = g.b
        b.s_("s_sub_u32", s(sT0), s(sRho), 1)
        b.s_("s_lshl3_add_u32", s(sT0), s(sT0), s(sJ))
        b.s_("s_lshl_b32", s(sT0), s(sT0), 15)
        b.s_("s_add_u32", s(sT0), s(sT0), s(sWoff))
        b.s_("s_add_u32", s(sT1), s(sT0), 4096)
        b.v_("v_mov_b32", v(vE), v(vL))
        b.v_("v_permlane32_swap_b32", v(vL), v(vE))
        b.v_("v_add_f32", v(vE), v(vL), v(vE))
        b.v_("v_rcp_f32", v(vE), v(vE))
        for f in range(8):
            t, ss = f >> 1, f & 1
            for jp in range(4):
                r = OACC + 16 * t + 8 * ss + 2 * jp
                b.v_("v_mul_f32", v(r), v(r), v(vE))
                b.v_("v_mul_f32", v(r + 1), v(r + 1), v(vE))
            for jp in range(4):
                r = OACC + 16 * t + 8 * ss + 2 * jp
                b.v_("v_cvt_pk_bf16_f32", v(OF + 4 * f + jp), v(r), v(r + 1))
            b.store4(OF + 4 * f, vOo, sO, s(sT0 if f < 4 else sT1), (f & 3) * 1024, g.o["opol"])

    def attention(g):
        b = g.b
        if g.o["prio"]: b.other(f"s_setprio {g.o['prio']}")
        b.s_("s_mov_b32", s(sThr), f32hex(g.o["thr"]))
        b.s_("s_mov_b32", s(sC), f32hex(math.log2(math.e) / math.sqrt(128.0)))
        b.s_("s_mov_b32", s(sSlot), 0)
        b.s_("s_lshl_b32", s(sWoff), s(sW), 13)
        b.v_("v_bfe_u32", v(vE), "v0", 3, 2)
        b.v_("v_lshlrev_b32", v(vKa0), 11, v(vE))
        b.v_("v_and_b32", v(vE), 7, "v0")
        b.v_("v_lshl_add_u32", v(vKa0), v(vE), 6, v(vKa0))
        b.v_("v_bfe_u32", v(vE), "v0", 2, 2)
        b.v_("v_lshrrev_b32", v(vE + 1), 5, "v0")
        b.v_("v_xor_b32", v(vE), v(vE), v(vE + 1))
        b.v_("v_lshl_add_u32", v(vKa0), v(vE), 4, v(vKa0))
        b.v_("v_xor_b32", v(vKa1), 32, v(vKa0))
        g.lane_tr(vVa, 1024, vE, vE + 1)
        b.v_("v_add_u32", v(vWa), LWO, v(vVa))
        b.v_("v_lshlrev_b32", v(vOo), 4, "v0")
        b.s_("s_cmp_eq_u32", s(sW), 3)
        b.s_("s_cselect_b32", s(sT0), 16, 0)
        b.v_("v_and_b32", v(vE), s(sT0), "v0")
        b.v_("v_lshl_add_u32", v(vOo), v(vE), 26, v(vOo))
        for i in range(32): b.v_("v_mov_b32", v(OUTA + i), 0)
        for p in range(8): b.barrier()
        b.label("L_att_round")
        b.barrier()
        sk = g.lab("nofin")
        b.s_("s_cmp_eq_u32", s(sRho), 0)
        b.branch("s_cbranch_scc1", sk)
        g.finalize()
        b.label(sk)
        b.s_("s_cmp_eq_u32", s(sRho), 4)
        b.branch("s_cbranch_scc1", "L_att_tail")
        b.s_("s_add_u32", s(sT0), s(sSlot), 2)
        b.s_("s_cmp_ge_u32", s(sT0), 3)
        b.s_("s_cselect_b32", s(sT1), 3, 0)
        b.s_("s_sub_u32", s(sT0), s(sT0), s(sT1))
        b.s_("s_lshl_b32", s(sT0), s(sT0), 15)
        b.s_("s_add_u32", s(sT0), s(sT0), s(sWoff))
        b.v_("v_lshlrev_b32", v(vE), 4, "v0")
        b.v_("v_add_u32", v(vE), s(sT0), v(vE))
        b.s_("s_mov_b32", s(sI), 0)
        b.barrier()
        for f in range(8): b.ds_read128(QF + 4 * f, vE, f * 1024)
        b.wait(lgkm=0)
        b.barrier()
        b.s_("s_cmp_eq_u32", s(sRho), 0)
        b.branch("s_cbranch_scc1", "L_att_first_noop")
        g.body(True, True)
        b.branch("s_branch", "L_att_loop")
        b.label("L_att_first_noop")
        b.hist = []
        g.body(True, False)
        b.label("L_att_loop")
        b.hist = []
        b.s_("s_cmp_eq_u32", s(sI), 8)
        b.branch("s_cbranch_scc1", "L_att_rend")
        b.s_("s_cmp_eq_u32", s(sLd), 0)
        b.branch("s_cbranch_scc1", "L_att_mid_noop")
        b.barrier()
        g.body(False, True)
        b.branch("s_branch", "L_att_loop")
        b.label("L_att_mid_noop")
        b.hist = []
        b.barrier()
        g.body(False, False)
        b.branch("s_branch", "L_att_loop")
        b.label("L_att_rend")
        b.hist = []
        g.flush_carry()
        b.s_("s_add_u32", s(sRho), s(sRho), 1)
        b.nop(12)
        b.branch("s_branch", "L_att_round")
        b.label("L_att_tail")
        b.hist = []
        b.s_("s_mov_b32", s(sI), 0)
        b.s_("s_mov_b32", s(sLd), 1)
        b.branch("s_branch", "L_att_tail_in")
        b.label("L_att_tail_loop")
        b.barrier()
        b.label("L_att_tail_in")
        own = g.mf_op()
        for k in range(7): g.issue_rd(own[k], k)
        b.s_("s_cmp_lt_u32", s(sI), 10)
        b.s_("s_cselect_b32", s(sLd), 1, 0)
        g.next_foreign(sT1, sLd)
        b.s_("s_lshl_b32", s(sOo), s(sT1), 15)
        b.s_("s_add_u32", s(sOo), s(sOo), s(sWoff))
        b.s_("s_add_u32", s(sOo2), s(sOo), 4096)
        b.wait(vm=0)
        for k in range(16):
            g.issue_mf(own[k], k % 8)
            if k + 7 < 16: g.issue_rd(own[k + 7], (k + 7) % 8)
        g.oload_group(0, 8)()
        b.v_("v_xor_b32", v(vWa), "0x4000", v(vWa))
        b.s_("s_add_u32", s(sI), s(sI), 1)
        b.s_("s_cmp_lt_u32", s(sI), 11)
        b.branch("s_cbranch_scc1", "L_att_tail_loop")
        b.v_("v_and_b32", v(vE), 31, "v0")
        b.v_("v_lshlrev_b32", v(vE), 11, v(vE))
        b.v_("v_lshrrev_b32", v(vE + 1), 5, "v0")
        b.v_("v_lshl_add_u32", v(vE), v(vE + 1), 4, v(vE))
        b.s_("s_lshl_b32", s(sT0), s(sW), 16)
        for f in range(4):
            for jp in range(4):
                r = OUTA + 8 * f + 2 * jp
                b.v_("v_cvt_pk_bf16_f32", v(S0 + 4 * f + jp), v(r), v(r + 1))
            b.store4(S0 + 4 * f, vE, sOUT, s(sT0), f * 32)
        b.other("s_endpgm")
        g.emit_rare()

    def h_dma4(g, voffs, srd, soff_exprs, ldsbase_s, ldsoff, pol, tag=None, imm=False):
        pass
    def m0(g, base, off):
        b = g.b
        if base is None:
            b.s_("s_add_u32", "m0", s(sWoff), off)
        else:
            b.s_("s_add_u32", "m0", s(base), off)
    def h_kv(g, fill, tag=None):
        b = g.b
        pol = g.o["kvpol"]
        for u in range(4):
            g.m0(fill, u * 1024)
            b.dma(hKo + u, sK, s(sKVg), 0, pol, tag)
        g.m0(fill, 16384)
        for u in range(4):
            b.dma(hVo, sV, s(sKVg), u * 1024, pol, tag)
    def h_kv_adv(g, last_in_round):
        b = g.b
        b.s_("s_add_u32", s(sKVg), s(sKVg), (8 * 131072 - 7 * 16384) if last_in_round else 16384)
    def h_wq(g, i, hoff_s, lds, tag=None):
        b = g.b
        b.s_("s_add_u32", s(sT0), s(sStart), i)
        b.s_("s_and_b32", s(sT0), s(sT0), 7)
        b.s_("s_lshl_b32", s(sT0), s(sT0), 19)
        b.s_("s_add_u32", s(sT0), s(sT0), s(hoff_s))
        for u in range(4):
            g.m0(None, lds + u * 1024)
            if u: b.s_("s_add_u32", s(sT0), s(sT0), 32768)
            b.dma(hQo, sWQ, s(sT0), 0, g.o["wpol"], tag)
    def h_wo(g, head_s, lds):
        b = g.b
        b.s_("s_lshl_b32", s(sT0), s(head_s), 17)
        b.s_("s_lshl3_add_u32", s(sT0), s(sWoff), s(sT0))
        for u in range(4):
            g.m0(None, lds + u * 1024)
            if u: b.s_("s_add_u32", s(sT0), s(sT0), 8192)
            b.dma(hWo, sWO, s(sT0), 0, g.o["wpol"])
    def h_x(g, p, lds, tag=None):
        b = g.b
        b.s_("s_add_u32", s(sT0), s(sStart), p)
        b.s_("s_and_b32", s(sT0), s(sT0), 7)
        b.s_("s_lshl_b32", s(sT0), s(sT0), 7)
        b.s_("s_lshl3_add_u32", s(sT0), s(sWoff), s(sT0))
        for u in range(4):
            g.m0(None, lds + u * 1024)
            if u: b.s_("s_add_u32", s(sT0), s(sT0), 8192)
            b.dma(hXo + (u & 1), sX, s(sT0), 0, g.o["wpol"], tag)
    def h_qproj(g, i, ra, off0, mid=None):
        L = []
        for ks in range(4):
            for t in range(4):
                base = off0 + ks * 4096 + t * 256
                L.append(dict(d=QACC + 16 * t, b=XF + 16 * i + 4 * ks, c=None if (i == 0 and ks == 0) else QACC + 16 * t,
                              rd=[("tr", ra, base), ("tr", ra, base + 1024)]))
        for k in range(7): g.issue_rd(L[k], k, HAF)
        if mid: mid()
        for k in range(16):
            g.issue_mf(L[k], k % 8, HAF)
            if k + 7 < 16: g.issue_rd(L[k + 7], (k + 7) % 8, HAF)
    def h_cvtq(g):
        b = g.b
        for f in range(8):
            for jp in range(4):
                r = QACC + 8 * f + 2 * jp
                b.v_("v_cvt_pk_bf16_f32", v(HAF + 4 * f + jp), v(r), v(r + 1))
    def h_poll_check(g):
        b = g.b
        lp, ok = g.lab("poll"), g.lab("pollok")
        b.s_("s_mov_b32", s(sSpin), 0)
        b.label(lp)
        b.v_("v_readfirstlane_b32", s(sT0), v(hPoll))
        b.s_("s_sub_u32", s(sT1), s(sRho), 1)
        b.s_("s_lshl_b32", s(sT1), s(sT1), 3)
        b.s_("s_lshr_b32", s(sT0), s(sT0), s(sT1))
        b.s_("s_and_b32", s(sT0), s(sT0), 255)
        b.s_("s_cmp_ge_u32", s(sT0), 8)
        b.branch("s_cbranch_scc1", ok)
        b.s_("s_add_u32", s(sSpin), s(sSpin), 1)
        b.s_("s_cmp_ge_u32", s(sSpin), "0x80000")
        b.branch("s_cbranch_scc1", ok)
        b.other("s_sleep 1")
        b.load1(hPoll, hFlagP, sDBG, 0, 0, " sc1")
        b.wait(vm=0)
        b.branch("s_branch", lp)
        b.label(ok)
    def h_signal(g):
        b = g.b
        b.s_("s_sub_u32", s(sT1), s(sRho), 1)
        b.s_("s_lshl_b32", s(sT1), s(sT1), 3)
        b.s_("s_lshl_b32", s(sT1), 1, s(sT1))
        b.v_("v_mov_b32", v(hOne), s(sT1))
        b.atomic_add(hOne, hFlagA, sDBG, 0, " sc1")

    def helper(g):
        b = g.b
        sQh = sOo
        b.label("L_helper")
        b.hist = []; b.ds = []; b.vm = []
        b.s_("s_sub_u32", s(sW), s(sW), 4)
        b.s_("s_lshl_b32", s(sWoff), s(sW), 12)
        b.v_("v_lshrrev_b32", v(hT), 3, "v0")
        b.v_("v_lshrrev_b32", v(hT + 1), 4, "v0")
        b.v_("v_and_b32", v(hT + 2), 7, "v0")
        b.v_("v_xor_b32", v(hT + 1), v(hT + 1), v(hT + 2))
        b.v_("v_lshlrev_b32", v(hT + 1), 4, v(hT + 1))
        b.v_("v_lshl_add_u32", v(hXo), v(hT), 10, v(hT + 1))
        b.v_("v_xor_b32", v(hXo + 1), 64, v(hXo))
        b.v_("v_lshrrev_b32", v(hT), 4, "v0")
        b.v_("v_lshlrev_b32", v(hT), 6, v(hT))
        b.v_("v_and_b32", v(hT + 1), 3, "v0")
        b.v_("v_lshl_add_u32", v(hT), v(hT + 1), 4, v(hT))
        b.v_("v_bfe_u32", v(hT + 1), "v0", 2, 2)
        b.v_("v_lshl_add_u32", v(hQo), v(hT + 1), 13, v(hT))
        b.v_("v_lshl_add_u32", v(hVo), v(hT + 1), 8, v(hT))
        b.s_("s_lshl_b32", s(sQh), s(sW), 17)
        R = [2 * KVS, LWO, LWQ]
        def pre(p):
            g.h_x(p, R[p % 3], ("pre", p))
            g.h_wq(p, sQh, R[p % 3] + 16384, ("pre", p))
        pre(0); pre(1)
        b.v_("v_lshrrev_b32", v(hT), 5, "v0")
        b.v_("v_lshl_add_u32", v(hT), v(hT), 2, v(hT + 1))
        b.v_("v_lshlrev_b32", v(hT), 10, v(hT))
        b.v_("v_bfe_u32", v(hT + 1), "v0", 4, 1)
        b.v_("v_lshl_add_u32", v(hT), v(hT + 1), 6, v(hT))
        b.v_("v_and_b32", v(hT + 1), 3, "v0")
        b.v_("v_lshl_add_u32", v(hWo), v(hT + 1), 4, v(hT))
        b.v_("v_bfe_u32", v(hT), "v0", 2, 3)
        b.v_("v_bfe_u32", v(hT + 2), "v0", 4, 1)
        b.v_("v_xor_b32", v(hT + 1), v(hT + 1), v(hT + 2))
        b.v_("v_lshlrev_b32", v(hT + 1), 4, v(hT + 1))
        b.v_("v_lshl_add_u32", v(hT), v(hT), 8, v(hT + 1))
        b.v_("v_lshrrev_b32", v(hT + 1), 5, "v0")
        b.v_("v_lshl_add_u32", v(hKo), v(hT + 1), 6, v(hT))
        b.v_("v_add_u32", v(hKo + 1), 128, v(hKo))
        b.v_("v_xor_b32", v(hKo + 2), 32, v(hKo))
        b.v_("v_add_u32", v(hKo + 2), 2048, v(hKo + 2))
        b.v_("v_add_u32", v(hKo + 3), 128, v(hKo + 2))
        pre(2)
        b.s_("s_mov_b32", s(sKVg), s(sWoff))
        b.s_("s_mov_b32", s(sFill), s(sWoff))
        g.h_kv(sFill, "kv0"); g.h_kv_adv(False)
        b.s_("s_add_u32", s(sFill), s(sFill), KVS)
        g.lane_tr(hRa, 2048, hT, hT + 1)
        b.v_("v_lshlrev_b32", v(hLin), 4, "v0")
        b.s_("s_lshl_b32", s(sT0), s(sGid), 2)
        b.v_("v_mov_b32", v(hFlagP), s(sT0))
        b.v_("v_add_u32", v(hT), s(sW), "v0")
        b.v_("v_cmp_eq_u32", "vcc", 0, v(hT))
        b.v_("v_mov_b32", v(hT + 1), BIG)
        b.v_("v_cndmask_b32", v(hFlagA), v(hT + 1), v(hFlagP), "vcc")
        b.v_("v_bfe_u32", v(hT), "v0", 1, 3)
        b.v_("v_lshrrev_b32", v(hT + 1), 5, "v0")
        b.v_("v_xor_b32", v(hT), v(hT), v(hT + 1))
        b.v_("v_lshlrev_b32", v(hT), 4, v(hT))
        b.v_("v_and_b32", v(hT + 1), 31, "v0")
        b.v_("v_lshl_add_u32", v(hT), v(hT + 1), 7, v(hT))
        b.v_("v_add_u32", v(hXa), s(sWoff), v(hT))
        for ks in range(1, 4): b.v_("v_xor_b32", v(hXa + ks), 32 * ks, v(hXa))
        for p in range(8):
            b.wait_tag(("pre", p))
            b.barrier()
            if 1 <= p and p + 2 < 8: pre(p + 2)
            if p == 6:
                b.s_("s_add_u32", s(sQh), s(sQh), 2048)
                g.h_wq(0, sQh, LWQ, "wq0")
                g.h_kv(sFill, "kv1"); g.h_kv_adv(False)
                b.s_("s_add_u32", s(sFill), s(sFill), KVS)
            for ks in range(4):
                b.v_("v_add_u32", v(hT + ks), R[p % 3], v(hXa + ks))
            b.v_("v_add_u32", v(hT + 4), R[p % 3], v(hRa))
            for ks in range(4): b.ds_read128(XF + 16 * p + 4 * ks, hT + ks, 0)
            g.h_qproj(p, hT + 4, 16384)
        g.h_cvtq()
        b.v_("v_add_u32", v(hRa), LWQ, v(hRa))
        b.wait(vm=8, lgkm=0)
        b.label("L_h_round")
        for i in range(8):
            b.hist = []
            b.barrier()
            def sloads_wq():
                sk = g.lab("nowq")
                b.s_("s_cmp_ge_u32", s(sRho), 3 if i < 7 else 2)
                b.branch("s_cbranch_scc1", sk)
                if i == 7: b.s_("s_add_u32", s(sQh), s(sQh), 2048)
                g.h_wq((i + 1) % 8, sQh, LWQ + ((i + 1) & 1) * 16384)
                b.label(sk)
            def sloads_wo():
                if i == 7:
                    b.s_("s_lshl3_add_u32", s(sT1), s(sRho), s(sJ))
                    g.h_wo(sT1, LWO)
                else:
                    sk = g.lab("nowo")
                    b.s_("s_cmp_lt_u32", s(sRho), 2 if i < 3 else 1)
                    b.branch("s_cbranch_scc1", sk)
                    g.next_foreign(sT1)
                    g.h_wo(sT1, LWO + ((i + 1) & 1) * 16384)
                    b.label(sk)
            if i == 0:
                b.s_("s_add_u32", s(sT0), s(sFill), s(sWoff))
                b.v_("v_add_u32", v(hT), s(sT0), v(hLin))
                for f in range(8): b.ds_write128(hT, HAF + 4 * f, f * 1024)
                b.wait(lgkm=0)
                b.barrier()
            if i in (1, 2):
                sk = g.lab("nosig")
                b.s_("s_cmp_eq_u32", s(sRho), 0)
                b.branch("s_cbranch_scc1", sk)
                if i == 1: g.h_signal()
                else: b.load1(hPoll, hFlagP, sDBG, 0, 0, " sc1")
                b.label(sk)
            sloads_wq()
            if g.o["order"] == "dma_first": sloads_wo()
            if i == 0: b.barrier()
            sk = g.lab("noqp")
            b.s_("s_cmp_ge_u32", s(sRho), 3)
            b.branch("s_cbranch_scc1", sk)
            g.h_qproj(i, hRa, (i & 1) * 16384)
            if i == 7: g.h_cvtq()
            b.label(sk)
            if g.o["order"] != "dma_first": sloads_wo()
            if i >= 6:
                nk, dn = g.lab("nokv"), g.lab("kvdone")
                b.s_("s_cmp_eq_u32", s(sRho), 3)
                b.branch("s_cbranch_scc1", nk)
            g.h_kv(sFill); g.h_kv_adv(i == 5)
            b.s_("s_add_u32", s(sFill), s(sFill), KVS)
            b.s_("s_cmp_ge_u32", s(sFill), 3 * KVS)
            b.s_("s_cselect_b32", s(sFill), s(sWoff), s(sFill))
            b.wait(vm=8, lgkm=0)
            if i >= 6:
                b.branch("s_branch", dn)
                b.label(nk)
                b.wait(vm=0, lgkm=0)
                b.label(dn)
            if i == 2:
                sk = g.lab("nochk")
                b.s_("s_cmp_eq_u32", s(sRho), 0)
                b.branch("s_cbranch_scc1", sk)
                g.h_poll_check()
                b.label(sk)
        b.s_("s_add_u32", s(sRho), s(sRho), 1)
        b.s_("s_cmp_lt_u32", s(sRho), 4)
        b.branch("s_cbranch_scc1", "L_h_round")
        for t in range(11):
            b.barrier()
            if t == 1: g.h_signal()
            if t == 2: b.load1(hPoll, hFlagP, sDBG, 0, 0, " sc1")
            if t < 10:
                g.next_foreign(sT1)
                g.h_wo(sT1, LWO + ((t + 1) & 1) * 16384)
                b.wait(vm=0)
            if t == 2: g.h_poll_check()
        b.label("L_end")
        b.other("s_endpgm")

    def build(g):
        b = g.b
        hdr = open("cdna_kernels/" + NAME + ".s.ref").read().split("; Override launch")[0]
        b.raw(hdr.rstrip())
        b.raw("; @launch grid=(256,1,1) block=(512,1,1) lds=163840")
        b.raw('.amdgcn_target "amdgcn-amd-amdhsa--gfx950"\n.text')
        b.raw(f".globl {NAME}_kernel\n.p2align 8\n.type {NAME}_kernel,@function\n{NAME}_kernel:")
        g.setup()
        g.attention()
        g.helper()
        b.raw('.section .rodata,"a"\n.p2align 6')
        b.raw(f".amdhsa_kernel {NAME}_kernel")
        b.raw("  .amdhsa_next_free_vgpr 256\n  .amdhsa_next_free_sgpr 102\n  .amdhsa_accum_offset 256\n  .amdhsa_group_segment_fixed_size 0\n  .amdhsa_kernarg_size 104\n  .amdhsa_user_sgpr_count 2\n  .amdhsa_user_sgpr_kernarg_segment_ptr 1\n  .amdhsa_system_sgpr_workgroup_id_x 1\n.end_amdhsa_kernel")
        return b.text()

if __name__ == "__main__":
    out = sys.argv[1] if len(sys.argv) > 1 else "k.s"
    opt = {}
    for a in sys.argv[2:]:
        k, x = a.split("=")
        try: x = eval(x)
        except Exception: pass
        opt[k] = x
    open(out, "w").write(Gen(**opt).build())
```

```python
import sys, struct, math
from asmb import *
NAME = "concat_heads__mha_block_cached__gqa_block_cached__near_ridge"

KVS = 32768
LWQ = 98304
LWO = 131072
BIG = 0x40000000

sK, sV, sWQ, sWO, sX, sO, sOUT, sDBG, sFL = 8, 12, 16, 20, 24, 28, 32, 36, 92
sW, sJ, sG, sRho, sStep, sStart, sThr, sC = 40, 41, 42, 43, 44, 48, 49, 50
sSlot, sKVg, sKVp, sOo, sOo2, sP32, sM64, sFill, sT0, sT1, sT2, sT3, sWoff, sSpin = 51, 52, 53, 54, 55, 56, 57, 58, 59, 60, 61, 62, 63, 64
sGid, sVsel, sQh = 65, 45, 46
sPi, sPROF = 66, 96
def s(n): return f"s{n}"
def v(n): return f"v{n}"

vTbl, vKa0, vKa1, vVa, vWa, vOo, vM, vL, vTa, vTb = 0, 1, 2, 3, 4, 5, 6, 7, 8, 9
vE = 10
vR = 14
vProf = 15
OACC, QF, S0, S1, P0, P1, OUTA, OF, AF = 16, 80, 112, 128, 144, 152, 160, 192, 224
hKo, hVo, hQo, hWo, hXo, hRa, hLin, hFlagP, hPoll, hTbl, hXa = 1, 5, 6, 7, 8, 10, 11, 12, 13, 14, 16
hT = 20
QACC, HAF, XF = 32, 96, 128
HP = [(28, 0), (29, 0), (30, 0), (31, 0)]

def f32hex(x): return "0x%08x" % struct.unpack("<I", struct.pack("<f", x))[0]

class Gen:
    def __init__(g, **opt):
        g.o = dict(prio=1, order="qp_first", kvpol=" nt", wpol="", opol=" sc1", lpol=" sc1", midbar=False, abl="", thr=65536.0, prof=False, wgrp=2, look=7)
        g.o.update(opt)
        g.b = Builder()
        g.rare = []
        g.uid = 0
    def lab(g, p):
        g.uid += 1
        return f"L_{p}_{g.uid}"
    def skip_if(g, cmp, a, c, fn, name="skip"):
        b = g.b
        sk = g.lab(name)
        b.s_(cmp, a, c)
        b.branch("s_cbranch_scc1", sk)
        b.cond_begin(); fn(); b.cond_end()
        b.label(sk)
    def stamp(g, k):
        if g.o["prof"]: g.b.other(f"s_memtime s[{84+2*k}:{85+2*k}]")
    def stamp_commit(g, regs):
        if not g.o["prof"]: return
        b = g.b
        b.wait(lgkm=0)
        for k, (r, add) in enumerate(regs):
            b.s_("s_add_u32", "m0", s(sPi), add)
            b.other(f"v_writelane_b32 v{r}, s{84+2*k}, m0")
        b.s_("s_add_u32", s(sPi), s(sPi), 1)
    def stamp_dump(g, regs, tmp):
        if not g.o["prof"]: return
        b = g.b
        b.other(f"v_mbcnt_lo_u32_b32 v{tmp}, -1, 0")
        b.other(f"v_mbcnt_hi_u32_b32 v{tmp}, -1, v{tmp}")
        b.v_("v_lshlrev_b32", v(tmp), 2, v(tmp))
        for k, r in enumerate(regs):
            b.store1(r, tmp, sPROF, 0, k * 256)

    def setup(g):
        b = g.b
        b.s_("s_cmp_ge_u32", "s2", 256)
        b.branch("s_cbranch_scc1", "L_end")
        b.other("s_load_dwordx4 s[80:83], s[0:1], 80")
        b.other("s_load_dwordx2 s[78:79], s[0:1], 96")
        b.s_("s_and_b32", "s3", "s2", 7)
        b.s_("s_lshr_b32", "s4", "s3", 2)
        b.s_("s_mul_i32", "s5", "s4", 40)
        b.s_("s_add_u32", "s0", "s0", "s5")
        b.s_("s_addc_u32", "s1", "s1", 0)
        b.other("s_load_dwordx8 s[68:75], s[0:1], 0")
        b.other("s_load_dwordx2 s[76:77], s[0:1], 32")
        if g.o["prof"]:
            b.other("s_memtime s[100:101]")
        b.v_("v_readfirstlane_b32", s(sW), "v0")
        b.s_("s_lshr_b32", "s6", "s2", 3)
        b.s_("s_lshr_b32", s(sG), "s6", 3)
        b.s_("s_and_b32", s(sJ), "s6", 7)
        b.s_("s_and_b32", "s7", "s3", 3)
        b.s_("s_lshl_b32", "s7", "s7", 2)
        b.s_("s_add_u32", "s7", "s7", s(sG))
        b.s_("s_lshr_b32", s(sW), s(sW), 6)
        b.s_("s_lshl_b32", s(sGid), "s4", 4)
        b.s_("s_add_u32", s(sGid), s(sGid), "s7")
        b.s_("s_lshl_b32", s(sStart), s(sG), 1)
        b.s_("s_add_u32", s(sStart), s(sStart), s(sJ))
        b.s_("s_and_b32", s(sStart), s(sStart), 7)
        b.s_("s_mov_b32", s(sRho), 0)
        b.s_("s_mov_b32", s(sP32), KVS)
        b.s_("s_mov_b32", s(sM64), -2 * KVS)
        b.v_("v_and_b32", "v0", 63, "v0")
        b.s_("s_and_b32", s(sT3), s(sW), 3)
        b.s_("s_lshl_b32", s(sWoff), s(sT3), 12)
        b.s_("s_lshl_b32", s(sQh), s(sT3), 17)
        hX, hQ = hXo, hQo
        b.v_("v_lshrrev_b32", v(hT), 3, "v0")
        b.v_("v_lshrrev_b32", v(hT + 1), 4, "v0")
        b.v_("v_and_b32", v(hT + 2), 7, "v0")
        b.v_("v_xor_b32", v(hT + 1), v(hT + 1), v(hT + 2))
        b.v_("v_lshlrev_b32", v(hT + 1), 4, v(hT + 1))
        b.v_("v_lshl_add_u32", v(hX), v(hT), 10, v(hT + 1))
        b.v_("v_xor_b32", v(hX + 1), 64, v(hX))
        b.v_("v_lshrrev_b32", v(hT), 4, "v0")
        b.v_("v_lshlrev_b32", v(hT), 6, v(hT))
        b.v_("v_and_b32", v(hT + 1), 3, "v0")
        b.v_("v_lshl_add_u32", v(hT), v(hT + 1), 4, v(hT))
        b.v_("v_bfe_u32", v(hT + 1), "v0", 2, 2)
        b.v_("v_lshl_add_u32", v(hQ), v(hT + 1), 13, v(hT))
        b.v_("v_lshl_add_u32", v(hVo), v(hT + 1), 8, v(hT))
        b.wait(lgkm=0)
        def srd(d, p, off):
            b.s_("s_add_u32", s(d), s(p), off)
            b.s_("s_addc_u32", s(d + 1), s(p + 1), 0)
            b.s_("s_mov_b32", s(d + 3), "0x20000")
        b.s_("s_mul_i32", s(sT0), "s7", 114688)
        srd(sX, 68, s(sT0)); b.s_("s_mov_b32", s(sX + 2), 114688)
        b.s_("s_lshl_b32", s(sT0), s(sJ), 8)
        srd(sWQ, 74, s(sT0)); b.s_("s_sub_u32", s(sWQ + 2), "0x400000", s(sT0))
        b.s_("s_lshl_b32", s(sT0), "s7", 5)
        b.s_("s_add_u32", s(sT0), s(sT0), s(sJ))
        b.s_("s_lshl_b32", s(sT0), s(sT0), 17)
        srd(sK, 70, s(sT0)); b.s_("s_sub_u32", s(sK + 2), "0x4000000", s(sT0))
        srd(sV, 72, s(sT0)); b.s_("s_sub_u32", s(sV + 2), "0x4000000", s(sT0))
        b.s_("s_lshl_b32", s(sT0), s(sJ), 7)
        srd(sWO, 76, s(sT0)); b.s_("s_sub_u32", s(sWO + 2), "0x400000", s(sT0))
        b.s_("s_lshl_b32", s(sT0), s(sGid), 20)
        srd(sO, 78, s(sT0)); b.s_("s_mov_b32", s(sO + 2), "0x100000")
        b.s_("s_lshl_b32", s(sT0), s(sGid), 9)
        b.s_("s_add_u32", s(sT0), s(sT0), "0x2000000")
        srd(sFL, 78, s(sT0)); b.s_("s_mov_b32", s(sFL + 2), 512)
        b.s_("s_lshl_b32", s(sT1), "s4", 10)
        b.s_("s_lshl_b32", s(sT2), s(sJ), 7)
        b.s_("s_add_u32", s(sT1), s(sT1), s(sT2))
        b.s_("s_mul_i32", s(sT0), "s7", 229376)
        b.s_("s_add_u32", s(sT0), s(sT0), s(sT1))
        srd(sOUT, 80, s(sT0)); b.s_("s_sub_u32", s(sOUT + 2), 229376, s(sT1))
        b.s_("s_lshl_b32", s(sT0), s(sGid), 3)
        srd(sDBG, 82, s(sT0)); b.s_("s_mov_b32", s(sDBG + 2), 4)
        if g.o["prof"]:
            b.s_("s_lshl_b32", s(sT0), "s2", 13)
            b.s_("s_lshl_b32", s(sT1), s(sW), 10)
            b.s_("s_add_u32", s(sT0), s(sT0), s(sT1))
            b.s_("s_add_u32", s(sT0), s(sT0), "0x4000000")
            srd(sPROF, 78, s(sT0)); b.s_("s_mov_b32", s(sPROF + 2), 1024)
            b.s_("s_mov_b32", s(sPi), 0)
        b.s_("s_cmp_ge_u32", s(sW), 4)
        b.branch("s_cbranch_scc1", "L_helper")

    def head_table(g, dst, t0, t1, t2):
        b = g.b
        b.v_("v_and_b32", v(t0), 7, "v0")
        b.v_("v_lshlrev_b32", v(t1), 2, v(t0))
        b.s_("s_mov_b32", s(sT0), "0x21065403")
        b.v_("v_lshrrev_b32", v(t1), v(t1), s(sT0))
        b.v_("v_and_b32", v(t1), 7, v(t1))
        b.s_("s_lshl_b32", s(sT0), s(sG), 1)
        b.v_("v_add_u32", v(t1), s(sT0), v(t1))
        b.v_("v_subrev_u32", v(t2), 7, v(t1))
        b.v_("v_min_u32", v(t1), v(t1), v(t2))
        b.v_("v_add_u32", v(t1), 1, v(t1))
        b.v_("v_cmp_eq_u32", "vcc", 1, v(t0))
        b.v_("v_cndmask_b32", v(t1), v(t1), 0, "vcc")
        b.v_("v_add_u32", v(t1), s(sJ), v(t1))
        b.v_("v_and_b32", v(t1), 7, v(t1))
        b.s_("s_mov_b32", s(sT0), 0xE2)
        b.v_("v_lshrrev_b32", v(t2), v(t0), s(sT0))
        b.v_("v_and_b32", v(t2), 1, v(t2))
        b.v_("v_lshrrev_b32", v(t0), 3, "v0")
        b.v_("v_add_u32", v(t0), v(t0), v(t2))
        b.v_("v_subrev_u32", v(t0), 2, v(t0))
        b.v_("v_lshl_add_u32", v(dst), v(t0), 3, v(t1))

    def lane_tr(g, dst, hmul, t0):
        b = g.b
        b.v_("v_lshrrev_b32", v(dst), 5, "v0")
        b.v_("v_mul_u32_u24", v(dst), hmul, v(dst))
        b.v_("v_bfe_u32", v(t0), "v0", 2, 2)
        b.v_("v_lshl_add_u32", v(dst), v(t0), 6, v(dst))
        b.v_("v_bfe_u32", v(t0), "v0", 4, 1)
        b.v_("v_lshl_add_u32", v(dst), v(t0), 5, v(dst))
        b.v_("v_and_b32", v(t0), 1, "v0")
        b.v_("v_lshl_add_u32", v(dst), v(t0), 4, v(dst))
        b.v_("v_bfe_u32", v(t0), "v0", 1, 1)
        b.v_("v_lshl_add_u32", v(dst), v(t0), 3, v(dst))

    def mf_qk(g, tile):
        L = []
        D = S0 if tile == 0 else S1
        for st in range(8):
            off = tile * 8192 + (st >> 2) * 1024 + ((st >> 1) & 1) * 512
            L.append(dict(d=D, b=QF + 4 * st, c=None if st == 0 else D, rd=[("b128", vKa1 if st & 1 else vKa0, off)]))
        return L
    def mf_pv(g, half, zero=False):
        L = []
        P = P1 if half == 0 else P0
        for k2 in range(2):
            ks = half * 2 + k2
            for t in range(4):
                base = 16384 + ks * 4096 + t * 256
                L.append(dict(d=OACC + 16 * t, b=P + 4 * k2, c=None if (zero and k2 == 0) else OACC + 16 * t,
                              rd=[("tr", vVa, base), ("tr", vVa, base + 2048)]))
        return L
    def mf_op(g, wa=vWa, of=OF, woff=0):
        L = []
        for ks in range(8):
            for nt in range(2):
                base = woff + ks * 2048 + nt * 256
                L.append(dict(d=OUTA + 16 * nt, b=of + 4 * ks, c=OUTA + 16 * nt,
                              rd=[("tr", wa, base), ("tr", wa, base + 512)]))
        return L
    def issue_rd(g, m, ring, af=AF):
        b = g.b
        a = af + 4 * ring
        for k, (kind, ad, off) in enumerate(m["rd"]):
            if kind == "b128": b.ds_read128(a, ad, off)
            else: b.ds_tr(a + 2 * k, ad, off)
    def issue_mf(g, m, ring, af=AF):
        g.b.mfma32(m["d"], af + 4 * ring, m["b"], m["c"])
    def prewait(g, rings, af=AF):
        b = g.b
        first = V(af + 4 * rings[0], 4)
        if not any(d & first for d in b.ds): return
        allr = set()
        for r in rings: allr |= V(af + 4 * r, 4)
        k = max(i for i, d in enumerate(b.ds) if d & allr)
        b.wait(lgkm=min(len(b.ds) - 1 - k, 15))

    def stream(g, own, pre, post, carry_in, carry_out, af=AF, ring0=0):
        b = g.b
        N = len(own); LK = g.o["look"]; G = g.o["wgrp"]
        R = lambda k: (k + ring0) % 8
        nxt = 0
        def rd_upto(k):
            nonlocal nxt
            while nxt <= k and nxt < N:
                g.issue_rd(own[nxt], R(nxt), af); nxt += 1
        if carry_in:
            assert ring0 == 0
            rd_upto(3)
            for c in range(4):
                for op in pre.get(c - 4, []): op()
                g.issue_mf(carry_in[c], 4 + c, af)
                rd_upto(c - 4 + LK)
                for op in post.get(c - 4, []): op()
        else:
            rd_upto(LK - 1)
        last = N - 4 if carry_out else N
        for k in range(last):
            for op in pre.get(k, []): op()
            g.prewait([R(x) for x in range(k, min(k + G, nxt))], af)
            g.issue_mf(own[k], R(k), af)
            rd_upto(k + LK)
            for op in post.get(k, []): op()

    def softmax_ops(g, Sx, Px, first, after_check=None):
        b = g.b
        ops = []
        A = ops.append
        if first:
            A(lambda: b.v_("v_max3_f32", v(vE), v(Sx), v(Sx + 1), v(Sx + 2)))
            A(lambda: b.v_("v_max3_f32", v(vE + 1), v(Sx + 3), v(Sx + 4), v(Sx + 5)))
            A(lambda: b.v_("v_max3_f32", v(vE + 2), v(Sx + 6), v(Sx + 7), v(Sx + 8)))
            A(lambda: b.v_("v_max3_f32", v(vE + 3), v(Sx + 9), v(Sx + 10), v(Sx + 11)))
            A(lambda: b.v_("v_max3_f32", v(vE), v(vE), v(Sx + 12), v(Sx + 13)))
            A(lambda: b.v_("v_max3_f32", v(vE + 1), v(vE + 1), v(Sx + 14), v(Sx + 15)))
            A(lambda: b.v_("v_max3_f32", v(vE), v(vE), v(vE + 2), v(vE + 3)))
            A(lambda: b.v_("v_max_f32", v(vE), v(vE), v(vE + 1)))
            A(lambda: b.v_("v_mov_b32", v(vE + 1), v(vE)))
            A(lambda: b.v_("v_permlane32_swap_b32", v(vE), v(vE + 1)))
            A(lambda: b.v_("v_max_f32", v(vE), v(vE), v(vE + 1)))
            A(lambda: b.v_("v_mul_f32", v(vM), s(sC), v(vE)))
        for r in range(2):
            A(lambda r=r: b.v_("v_fma_f32", v(Sx + r), v(Sx + r), s(sC), "-" + v(vM)))
        ops += g.exp_ops(Sx, Px, True)
        if first:
            A(lambda: b.v_("v_add_f32", v(vL), v(vTa), v(vTb)))
        else:
            def chk():
                r, k = g.lab("rare"), g.lab("back")
                b.v_("v_add_f32", v(vTa), v(vTa), v(vTb))
                b.v_("v_cmp_nge_f32", "vcc", s(sThr), v(vTa))
                b.branch("s_cbranch_vccnz", r)
                b.label(k)
                b.v_("v_add_f32", v(vL), v(vL), v(vTa))
                g.rare.append((r, k, Sx, Px))
            A(chk)
        return ops
    def exp_ops(g, Sx, Px, fma):
        b = g.b
        ops = []
        A = ops.append
        def tmp(p): return (vTa, vTb) if p == 0 else (vE + 2 * (p & 1), vE + 2 * (p & 1) + 1)
        def acc(q):
            f0, f1 = tmp(q)
            A(lambda: b.v_("v_cvt_pk_bf16_f32", v(Px + q), v(f0), v(f1)))
            if q > 0:
                A(lambda: b.v_("v_add_f32", v(vTa), v(vTa), v(f0)))
                A(lambda: b.v_("v_add_f32", v(vTb), v(vTb), v(f1)))
        for p in range(8):
            e0, e1 = tmp(p)
            if fma and p < 7:
                A(lambda p=p: b.v_("v_fma_f32", v(Sx + 2 * p + 2), v(Sx + 2 * p + 2), s(sC), "-" + v(vM)))
            A(lambda p=p, e0=e0: b.v_("v_exp_f32", v(e0), v(Sx + 2 * p)))
            if fma and p < 7:
                A(lambda p=p: b.v_("v_fma_f32", v(Sx + 2 * p + 3), v(Sx + 2 * p + 3), s(sC), "-" + v(vM)))
            A(lambda p=p, e1=e1: b.v_("v_exp_f32", v(e1), v(Sx + 2 * p + 1)))
            if p > 0: acc(p - 1)
        acc(7)
        return ops

    def emit_rare(g):
        b = g.b
        for (r, k, Sx, Px) in g.rare:
            b.label(r)
            b.hist = []; b.ds = []
            b.nop(16)
            b.v_("v_max3_f32", v(vE), v(Sx), v(Sx + 1), v(Sx + 2))
            for i in range(3, 15, 2):
                b.v_("v_max3_f32", v(vE), v(vE), v(Sx + i), v(Sx + i + 1))
            b.v_("v_max3_f32", v(vE), v(vE), v(Sx + 15), 0)
            b.v_("v_mov_b32", v(vE + 1), v(vE))
            b.v_("v_permlane32_swap_b32", v(vE), v(vE + 1))
            b.v_("v_max_f32", v(vE), v(vE), v(vE + 1))
            b.v_("v_add_f32", v(vM), v(vM), v(vE))
            for i in range(16):
                b.v_("v_sub_f32", v(Sx + i), v(Sx + i), v(vE))
            b.v_("v_exp_f32", v(vE + 1), "-" + v(vE))
            b.v_("v_mul_f32", v(vL), v(vL), v(vE + 1))
            for i in range(64):
                b.v_("v_mul_f32", v(OACC + i), v(OACC + i), v(vE + 1))
            for op in g.exp_ops(Sx, Px, False): op()
            b.v_("v_add_f32", v(vTa), v(vTa), v(vTb))
            b.nop(2)
            b.branch("s_branch", k)
        g.rare = []

    def rcp_ops(g):
        b = g.b
        return [lambda: b.v_("v_mov_b32", v(vR), v(vL)),
                lambda: b.v_("v_permlane32_swap_b32", v(vL), v(vR)),
                lambda: b.v_("v_add_f32", v(vR), v(vL), v(vR)),
                lambda: b.v_("v_rcp_f32", v(vR), v(vR))]
    def fin_ops(g):
        b = g.b
        ops = []
        A = ops.append
        for f in range(8):
            for jp in range(4):
                r = OACC + 8 * f + 2 * jp
                A(lambda r=r: b.emit(Ins(f"v_pk_mul_f32 {vr(r,2)}, {vr(r,2)}, {vr(vR,2)} op_sel_hi:[1,0]", "valu", V(r, 2) | V(vR), V(r, 2))))
            for jp in range(4):
                r = OACC + 8 * f + 2 * jp
                A(lambda r=r, f=f, jp=jp: b.v_("v_cvt_pk_bf16_f32", v(OF + 4 * f + jp), v(r), v(r + 1)))
            A(lambda f=f: b.store4(OF + 4 * f, vOo, sO, s(sOo if f < 4 else sOo2), (f & 3) * 1024, g.o["opol"]))
        return ops
    def oload(g, k, of=OF):
        g.b.load4(of + 4 * k, vOo, sO, s(sOo if k < 4 else sOo2), (k & 3) * 1024, g.o["lpol"])
    def tbl_read(g, idx=None):
        b = g.b
        if idx is None:
            b.s_("s_add_u32", s(sStep), s(sStep), 1)
            b.v_("v_readlane_b32", s(sOo), v(vTbl), s(sStep))
        else:
            b.v_("v_readlane_b32", s(sOo), v(vTbl), idx)
        b.s_("s_add_u32", s(sOo2), s(sOo), 4096)
    def flag_store(g, soff):
        b = g.b
        b.v_("v_lshlrev_b32", v(vE), 20, v(vOo))
        b.v_("v_mov_b32", v(vE + 1), 1)
        b.store1(vE + 1, vE, sFL, soff, 0, " sc1")

    def q_handoff(g):
        b = g.b
        def f1():
            b.s_("s_add_u32", s(sT0), s(sSlot), 2)
            b.s_("s_cmp_ge_u32", s(sT0), 3)
            b.s_("s_cselect_b32", s(sT1), 3, 0)
            b.s_("s_sub_u32", s(sT0), s(sT0), s(sT1))
            b.s_("s_lshl_b32", s(sT0), s(sT0), 15)
            b.s_("s_lshl1_add_u32", s(sT0), s(sWoff), s(sT0))
            b.v_("v_and_b32", v(vR), "0x3ff", v(vOo))
            b.v_("v_add_u32", v(vR), s(sT0), v(vR))
        def f2():
            b.barrier()
            for f in range(8): b.ds_read128(QF + 4 * f, vR, f * 1024)
        def f3():
            q = V(QF, 32)
            ks = [i for i, d in enumerate(b.ds) if d & q]
            if ks: b.wait(lgkm=min(len(b.ds) - 1 - max(ks), 15))
            b.barrier()
        return f1, f2, f3

    def body(g, kind, has_op):
        b = g.b
        pre, post = {}, {}
        def P(d, k, op): d.setdefault(k, []).append(op)
        def spread(ops, lo, hi):
            n = hi - lo + 1
            for i, op in enumerate(ops): P(post, lo + (i * n) // len(ops), op)
        def slotrot():
            b.s_("s_add_u32", s(sSlot), s(sSlot), 1)
            b.s_("s_cmp_eq_u32", s(sSlot), 3)
            b.s_("s_cselect_b32", s(sT2), s(sM64), s(sP32))
            b.s_("s_cselect_b32", s(sSlot), 0, s(sSlot))
        carry = g.mf_pv(1)[-4:]
        OPL = g.mf_op() if has_op else []
        n = len(OPL)
        g.stamp(0)
        if kind in ("mid", "own"):
            own = g.mf_qk(0) + OPL + g.mf_pv(0) + g.mf_qk(1) + g.mf_pv(1)
            N = len(own)
            smp = g.softmax_ops(S1, P1, False)
            sm0 = g.softmax_ops(S0, P0, False)
            P(post, -4, g.tbl_read)
            if has_op:
                spread(smp, -4, 17); spread(sm0, 18, N - 9)
            else:
                spread(smp, -4, 7); spread(sm0, 10, N - 9)
            if kind == "mid" and has_op:
                for ks in range(8):
                    P(pre, 8 + 2 * ks, lambda: b.wait(vm=7))
                    post.setdefault(9 + 2 * ks, []).insert(0, lambda ks=ks: g.oload(ks))
            elif kind == "own":
                def f():
                    b.s_("s_lshl_b32", s(sT0), s(sRho), 7)
                    b.s_("s_add_u32", s(sT0), s(sT0), s(sT3))
                    b.wait(vm=0)
                    g.flag_store2(s(sT0))
                P(pre, 24, f)
                for ks in range(8): post.setdefault(24 + ks, []).insert(0, lambda ks=ks: g.oload(ks))
            else:
                P(post, 8, lambda: g.skip_if("s_cmp_ge_u32", s(sOo), BIG, lambda: [g.oload(k) for k in range(8)], "nold"))
        elif kind == "first":
            own = OPL + g.mf_qk(0) + g.mf_pv(0) + g.mf_qk(1) + g.mf_pv(1, zero=True)
            N = len(own)
            smp = g.softmax_ops(S1, P1, False)
            f1, f2, f3 = g.q_handoff()
            P(post, -4, g.tbl_read); P(post, -3, f1)
            if has_op:
                for ks in range(8): P(pre, 2 * ks, lambda ks=ks: b.wait(vm=7 - ks))
                spread(smp + g.rcp_ops_late(), -4, n + 7)
                P(pre, 9, f2); P(pre, 13, f3)
            else:
                h = 40
                spread(smp[:h], -4, -1)
                P(pre, 0, f2)
                for op in smp[h:h + 12]: P(pre, 0, op)
                P(pre, 0, f3)
                spread(smp[h + 12:] + g.rcp_ops_late(), 0, 7)
            sm0 = g.softmax_ops(S0, P0, True)
            fin = g.fin_ops()
            spread(sm0[:44], n + 10, n + 17)
            rest = []
            a_, b_ = sm0[44:], fin
            while a_ or b_:
                rest += b_[:3]; b_ = b_[3:]
                rest += a_[:1]; a_ = a_[1:]
            spread(rest, n + 18, n + 23)
        elif kind == "first0":
            own = g.mf_qk(0) + g.mf_qk(1) + g.mf_pv(1, zero=True)
            N = len(own)
            f1, f2, f3 = g.q_handoff()
            f1(); f2(); f3()
            P(post, 0, g.tbl_read)
            spread(g.softmax_ops(S0, P0, True), 10, 15)
            carry = None
        if g.o["midbar"]:
            mb = {"mid": 23 if has_op else 9, "own": 31, "first": n + 23, "first0": 8}[kind]
            P(post, mb, b.barrier)
        P(post, N - 8, slotrot)
        P(post, N - 7, lambda: b.v_("v_add_u32", v(vKa0), s(sT2), v(vKa0)))
        P(post, N - 7, lambda: b.v_("v_add_u32", v(vKa1), s(sT2), v(vKa1)))
        lastrd = N - 1 - g.o["look"]
        P(post, max(N - 6, lastrd + 1), lambda: b.v_("v_add_u32", v(vVa), s(sT2), v(vVa)))
        P(post, N - 6, lambda: b.v_("v_xor_b32", v(vWa), "0x4000", v(vWa)))
        g.stream(own, pre, post, carry, True)
        g.stamp(1)
        b.wait(lgkm=0)
        g.stamp_commit([(vProf, 0), (vProf, 32)])

    def rcp_ops_late(g):
        return g.rcp_ops()
    def flag_store2(g, soff):
        b = g.b
        b.v_("v_lshlrev_b32", v(vR), 20, v(vOo))
        b.store1(vWa, vR, sFL, soff, 0, " sc1")

    def pre_dma(g, p, R):
        g.h_x(p, R[p % 3], ("pre", p))
        g.h_wq(p, R[p % 3] + 16384, ("pre", p))

    def attention(g):
        b = g.b
        R = [2 * KVS, LWO, LWQ]
        g.pre_dma(0, R); g.pre_dma(1, R); g.pre_dma(2, R)
        for i in range(32): b.v_("v_mov_b32", v(OUTA + i), 0)
        for p in range(8):
            b.wait_tag(("pre", p))
            b.barrier()
            if 1 <= p and p + 2 < 8: g.pre_dma(p + 2, R)
            if p == 6:
                if g.o["prio"]: b.other(f"s_setprio {g.o['prio']}")
                b.s_("s_mov_b32", s(sThr), f32hex(g.o["thr"]))
                b.s_("s_mov_b32", s(sC), f32hex(math.log2(math.e) / math.sqrt(128.0)))
                b.s_("s_mov_b32", s(sSlot), 0)
                b.s_("s_mov_b32", s(sStep), 0)
                b.v_("v_bfe_u32", v(vE), "v0", 3, 2)
                b.v_("v_lshlrev_b32", v(vKa0), 11, v(vE))
                b.v_("v_and_b32", v(vE), 7, "v0")
                b.v_("v_lshl_add_u32", v(vKa0), v(vE), 6, v(vKa0))
                b.v_("v_bfe_u32", v(vE), "v0", 2, 2)
                b.v_("v_lshrrev_b32", v(vE + 1), 5, "v0")
                b.v_("v_xor_b32", v(vE), v(vE), v(vE + 1))
                b.v_("v_lshl_add_u32", v(vKa0), v(vE), 4, v(vKa0))
                b.v_("v_xor_b32", v(vKa1), 32, v(vKa0))
                g.lane_tr(vVa, 1024, vE)
                b.v_("v_add_u32", v(vWa), LWO, v(vVa))
                b.v_("v_lshlrev_b32", v(vOo), 4, "v0")
                b.s_("s_cmp_eq_u32", s(sW), 3)
                b.s_("s_cselect_b32", s(sT0), 16, 0)
                b.v_("v_and_b32", v(vE), s(sT0), "v0")
                b.v_("v_lshl_add_u32", v(vOo), v(vE), 26, v(vOo))
                g.head_table(vR, vE, vE + 1, vE + 2)
                b.s_("s_lshl_b32", s(sT0), s(sW), 13)
                b.v_("v_cmp_gt_i32", "vcc", 0, v(vR))
                b.v_("v_lshlrev_b32", v(vR), 15, v(vR))
                b.v_("v_add_u32", v(vR), s(sT0), v(vR))
                b.v_("v_mov_b32", v(vE), BIG)
                if "ohot" in g.o["abl"]: b.v_("v_and_b32", v(vR), "0x7fff", v(vR))
                if "ooob" in g.o["abl"]: b.v_("v_or_b32", v(vR), "0x20000000", v(vR))
                b.v_("v_cndmask_b32", v(vTbl), v(vR), v(vE), "vcc")
                b.s_("s_lshl2_add_u32", s(sT3), s(sJ), s(sW))
                b.s_("s_lshl_b32", s(sT3), s(sT3), 2)
                b.s_("s_sub_u32", s(sT3), s(sT3), 128)
        b.barrier()
        g.body("first0", False)
        b.label("L_att_loop")
        b.hist = []
        b.s_("s_and_b32", s(sT0), s(sStep), 7)
        b.s_("s_cmp_lt_u32", s(sT0), 2)
        b.branch("s_cbranch_scc1", "L_att_special")
        b.s_("s_cmp_ge_u32", s(sOo), BIG)
        b.branch("s_cbranch_scc1", "L_att_mid_noop")
        b.barrier()
        g.body("mid", True)
        b.branch("s_branch", "L_att_loop")
        b.label("L_att_mid_noop")
        b.hist = []
        b.barrier()
        g.body("mid", False)
        b.branch("s_branch", "L_att_loop")
        b.label("L_att_special")
        b.hist = []
        b.s_("s_cmp_eq_u32", s(sStep), 1)
        b.branch("s_cbranch_scc1", "L_att_mid_noop")
        b.s_("s_cmp_eq_u32", s(sT0), 1)
        b.branch("s_cbranch_scc1", "L_att_own")
        b.s_("s_add_u32", s(sRho), s(sRho), 1)
        b.s_("s_cmp_eq_u32", s(sStep), 32)
        b.branch("s_cbranch_scc1", "L_att_tail")
        b.s_("s_cmp_eq_u32", s(sStep), 8)
        b.branch("s_cbranch_scc1", "L_att_first_noop")
        b.barrier()
        g.body("first", True)
        b.branch("s_branch", "L_att_loop")
        b.label("L_att_first_noop")
        b.hist = []
        b.barrier()
        g.body("first", False)
        b.branch("s_branch", "L_att_loop")
        b.label("L_att_own")
        b.hist = []
        b.barrier()
        g.body("own", True)
        b.branch("s_branch", "L_att_loop")
        g.att_tail()
        g.emit_rare()

    TLOC = [LWO, LWQ, LWQ + 16384, 2 * KVS, 0, 16384, KVS, KVS + 16384, LWO + 16384, LWO, 2 * KVS + 16384, LWQ]
    TIDX = [32, 33, 34, 35, 36, 37, 38, 39, 40, 42, 43, 44]
    def att_tail(g):
        b = g.b
        b.label("L_att_tail")
        b.hist = []; b.vm = ["t0"] * 8
        b.barrier()
        if g.o["prof"]: b.s_("s_mov_b32", s(sPi), 0)
        def tstamp():
            if g.o["prof"]:
                g.stamp(0); g.stamp_commit([(vM, 0)])
        pre, post = {}, {}
        def P(d, k, op): d.setdefault(k, []).append(op)
        def spread(ops, lo, hi):
            n = hi - lo + 1
            for i, op in enumerate(ops): P(post, lo + (i * n) // len(ops), op)
        def loads(t, of):
            def f():
                g.tbl_read(g.TIDX[t])
                for k in range(8):
                    b.load4(of + 4 * k, vOo, sO, s(sOo if k < 4 else sOo2), (k & 3) * 1024, g.o["lpol"], f"t{t}")
            return f
        own = g.mf_op() + g.mf_pv(0)
        P(post, -4, loads(2, QF))
        P(pre, 0, lambda: b.wait_tag("t0"))
        spread(g.softmax_ops(S1, P1, False) + g.rcp_ops(), -4, 15)
        P(post, 16, loads(3, S0))
        P(post, 20, lambda: g.tbl_read(33))
        g.stream(own, pre, post, g.mf_pv(1)[-4:], False)
        b.v_("v_and_b32", v(vKa0), "0x7ff", v(vWa))
        b.v_("v_add_u32", v(vKa1), 65536, v(vKa0))
        b.v_("v_add_u32", v(vVa), 131072, v(vKa0))
        for op in g.fin_ops(): op()
        nst = len(b.vm)
        loads(4, OACC)()
        b.barrier()
        def opl(t, of):
            loc = g.TLOC[t]
            return g.mf_op([vKa0, vKa1, vVa][loc >> 16], of, loc & 0xffff)
        tstamp()
        g.stream(opl(1, OF) + opl(2, QF), {16: [lambda: b.wait_tag("t2")]}, {}, None, False)
        b.s_("s_add_u32", s(sT0), s(sT3), 512)
        b.wait(vm=0, lgkm=0)
        g.flag_store2(s(sT0))
        tstamp()
        b.barrier()
        b.v_("v_and_b32", v(vE), "0x70", v(vOo))
        b.s_("s_lshl_b32", s(sT0), s(sW), 2)
        b.s_("s_add_u32", s(sT0), s(sT0), 384)
        g.stream(opl(3, S0) + opl(4, OACC), {}, {24: [lambda: b.load1(vE + 1, vE, sFL, s(sT0), 0, " sc1")]}, None, False)
        tstamp()
        lp, ok = g.lab("poll"), g.lab("pollok")
        b.s_("s_mov_b32", s(sSpin), 0)
        b.label(lp)
        b.wait(vm=0)
        b.v_("v_cmp_eq_u32", "vcc", 0, v(vE + 1))
        b.branch("s_cbranch_vccz", ok)
        b.s_("s_add_u32", s(sSpin), s(sSpin), 1)
        b.s_("s_cmp_ge_u32", s(sSpin), "0x100000")
        b.branch("s_cbranch_scc1", ok)
        b.load1(vE + 1, vE, sFL, s(sT0), 0, " sc1")
        b.branch("s_branch", lp)
        b.label(ok)
        b.vm = []
        tstamp()
        bufs = [OF, QF, S0, OACC + 32, OACC, OF, QF]
        for k in range(5): loads(5 + k, bufs[k])()
        b.barrier()
        own = []; pre, post = {}, {}
        for k in range(7):
            base = len(own)
            own += opl(5 + k, bufs[k])
            for ks in range(0, 8, 2):
                def w(k=k, ks=ks):
                    idx = [i for i, t in enumerate(b.vm) if t == f"t{5+k}"]
                    rem = 8 - (ks + 2)
                    if len(idx) > rem:
                        b.wait(vm=len(b.vm) - 1 - idx[len(idx) - rem - 1])
                P(pre, base + 2 * ks, w)
            if k < 2: P(post, base + 15, loads(10 + k, bufs[5 + k]))
        g.stream(own, pre, post, None, False)
        tstamp()
        b.v_("v_bfe_u32", v(vE), v(vOo), 4, 5)
        b.v_("v_lshlrev_b32", v(vE), 11, v(vE))
        b.v_("v_bfe_u32", v(vE + 1), v(vOo), 9, 1)
        b.v_("v_lshl_add_u32", v(vE), v(vE + 1), 4, v(vE))
        b.s_("s_lshl_b32", s(sT0), s(sW), 16)
        for f in range(4):
            for jp in range(4):
                r = OUTA + 8 * f + 2 * jp
                b.v_("v_cvt_pk_bf16_f32", v(P0 + 4 * f + jp), v(r), v(r + 1))
            b.store4(P0 + 4 * f, vE, sOUT, s(sT0), f * 32)
        if g.o["prof"]:
            b.wait(vm=0); tstamp()
        g.stamp_dump([vProf, vM], vE + 2)
        b.other("s_endpgm")

    def m0(g, base, off):
        g.b.s_("s_add_u32", "m0", s(sWoff if base is None else base), off)
    def h_k(g, tag=None):
        for u in range(4):
            g.m0(sFill, u * 1024)
            g.b.dma(hKo + u, sK, s(sKVg), 0, g.o["kvpol"], tag)
    def h_v(g, tag=None):
        b = g.b
        b.s_("s_cmp_lt_u32", s(sW), 2)
        b.s_("s_cselect_b32", s(sT0), s(sKVp), s(sKVg))
        b.s_("s_add_u32", s(sT0), s(sT0), s(sVsel))
        g.m0(sFill, 16384)
        for u in range(4):
            b.dma(hVo, sV, s(sT0), u * 1024, g.o["kvpol"], tag)
    def h_kv_adv(g, last_in_round):
        b = g.b
        b.s_("s_mov_b32", s(sKVp), s(sKVg))
        b.s_("s_add_u32", s(sKVg), s(sKVg), (8 * 131072 - 7 * 16384) if last_in_round else 16384)
        b.s_("s_add_u32", s(sFill), s(sFill), KVS)
        b.s_("s_cmp_ge_u32", s(sFill), 3 * KVS)
        b.s_("s_cselect_b32", s(sFill), s(sWoff), s(sFill))
    def h_wq(g, i, lds, tag=None):
        b = g.b
        b.s_("s_add_u32", s(sT0), s(sStart), i)
        b.s_("s_and_b32", s(sT0), s(sT0), 7)
        b.s_("s_lshl_b32", s(sT0), s(sT0), 19)
        b.s_("s_add_u32", s(sT0), s(sT0), s(sQh))
        for u in range(4):
            g.m0(None, lds + u * 1024)
            if u: b.s_("s_add_u32", s(sT0), s(sT0), 32768)
            b.dma(hQo, sWQ, s(sT0), 0, g.o["wpol"], tag)
    def h_wo(g, lds):
        b = g.b
        for u in range(4):
            g.m0(None, lds + u * 1024)
            if u: b.s_("s_add_u32", s(sT1), s(sT1), 8192)
            b.dma(hWo, sWO, s(sT1), 0, g.o["wpol"])
    def h_wo_t(g, t):
        g.b.v_("v_readlane_b32", s(sT1), v(hTbl), g.TIDX[t])
        g.h_wo(g.TLOC[t])
    def h_x(g, p, lds, tag=None):
        b = g.b
        b.s_("s_add_u32", s(sT0), s(sStart), p)
        b.s_("s_and_b32", s(sT0), s(sT0), 7)
        b.s_("s_lshl_b32", s(sT0), s(sT0), 7)
        b.s_("s_lshl3_add_u32", s(sT0), s(sWoff), s(sT0))
        for u in range(4):
            g.m0(None, lds + u * 1024)
            if u: b.s_("s_add_u32", s(sT0), s(sT0), 8192)
            b.dma(hXo + (u & 1), sX, s(sT0), 0, g.o["wpol"], tag)
    def mf_qp(g, i, ra, off0):
        L = []
        for ks in range(4):
            for t in range(4):
                base = off0 + ks * 4096 + t * 256
                L.append(dict(d=QACC + 16 * t, b=XF + 16 * i + 4 * ks, c=None if (i == 0 and ks == 0) else QACC + 16 * t,
                              rd=[("tr", ra, base), ("tr", ra, base + 1024)]))
        return L
    def h_cvtq(g):
        b = g.b
        for f in range(8):
            for jp in range(4):
                r = QACC + 8 * f + 2 * jp
                b.v_("v_cvt_pk_bf16_f32", v(HAF + 4 * f + jp), v(r), v(r + 1))
    def h_spin(g, reload):
        b = g.b
        lp, ok = g.lab("poll"), g.lab("pollok")
        b.s_("s_mov_b32", s(sSpin), 0)
        b.label(lp)
        b.v_("v_cmp_eq_u32", "vcc", 0, v(hPoll))
        b.branch("s_cbranch_vccz", ok)
        b.s_("s_add_u32", s(sSpin), s(sSpin), 1)
        b.s_("s_cmp_ge_u32", s(sSpin), "0x100000")
        b.branch("s_cbranch_scc1", ok)
        b.other("s_sleep 1")
        reload()
        b.wait(vm=0)
        b.branch("s_branch", lp)
        b.label(ok)

    def helper(g):
        b = g.b
        R = [2 * KVS, LWO, LWQ]
        b.label("L_helper")
        b.hist = []; b.ds = []; b.vm = []
        b.s_("s_sub_u32", s(sW), s(sW), 4)
        b.v_("v_and_b32", v(hT + 1), 3, "v0")
        b.v_("v_bfe_u32", v(hT), "v0", 2, 3)
        b.v_("v_bfe_u32", v(hT + 2), "v0", 4, 1)
        b.v_("v_xor_b32", v(hT + 1), v(hT + 1), v(hT + 2))
        b.v_("v_lshlrev_b32", v(hT + 1), 4, v(hT + 1))
        b.v_("v_lshl_add_u32", v(hT), v(hT), 8, v(hT + 1))
        b.v_("v_lshrrev_b32", v(hT + 1), 5, "v0")
        b.v_("v_lshl_add_u32", v(hKo), v(hT + 1), 6, v(hT))
        b.v_("v_add_u32", v(hKo + 1), 128, v(hKo))
        b.v_("v_xor_b32", v(hKo + 2), 32, v(hKo))
        b.v_("v_add_u32", v(hKo + 2), 2048, v(hKo + 2))
        b.v_("v_add_u32", v(hKo + 3), 128, v(hKo + 2))
        b.v_("v_bfe_u32", v(hT + 1), "v0", 2, 2)
        b.v_("v_lshrrev_b32", v(hT), 5, "v0")
        b.v_("v_lshl_add_u32", v(hT), v(hT), 2, v(hT + 1))
        b.v_("v_lshlrev_b32", v(hT), 10, v(hT))
        b.v_("v_bfe_u32", v(hT + 1), "v0", 4, 1)
        b.v_("v_lshl_add_u32", v(hT), v(hT + 1), 6, v(hT))
        b.v_("v_and_b32", v(hT + 1), 3, "v0")
        b.v_("v_lshl_add_u32", v(hWo), v(hT + 1), 4, v(hT))
        b.s_("s_mov_b32", s(sKVg), s(sWoff))
        b.s_("s_mov_b32", s(sKVp), BIG)
        b.s_("s_mov_b32", s(sFill), s(sWoff))
        b.s_("s_cmp_lt_u32", s(sW), 2)
        b.s_("s_mov_b32", s(sT0), 8192)
        b.s_("s_cselect_b32", s(sVsel), s(sT0), -8192)
        g.lane_tr(hRa, 2048, hT)
        b.v_("v_lshlrev_b32", v(hLin), 4, "v0")
        b.v_("v_and_b32", v(hFlagP), 31, "v0")
        b.v_("v_lshlrev_b32", v(hFlagP), 2, v(hFlagP))
        g.head_table(hTbl, hT, hT + 1, hT + 2)
        b.s_("s_lshl_b32", s(sT0), s(sW), 15)
        b.v_("v_cmp_gt_i32", "vcc", 0, v(hTbl))
        b.v_("v_lshlrev_b32", v(hTbl), 17, v(hTbl))
        b.v_("v_add_u32", v(hTbl), s(sT0), v(hTbl))
        b.v_("v_mov_b32", v(hT), BIG)
        if "whot" in g.o["abl"]: b.v_("v_and_b32", v(hTbl), "0x1ffff", v(hTbl))
        if "woob" in g.o["abl"]: b.v_("v_or_b32", v(hTbl), "0x20000000", v(hTbl))
        b.v_("v_cndmask_b32", v(hTbl), v(hTbl), v(hT), "vcc")
        b.v_("v_bfe_u32", v(hT), "v0", 1, 3)
        b.v_("v_lshrrev_b32", v(hT + 1), 5, "v0")
        b.v_("v_xor_b32", v(hT), v(hT), v(hT + 1))
        b.v_("v_lshlrev_b32", v(hT), 4, v(hT))
        b.v_("v_and_b32", v(hT + 1), 31, "v0")
        b.v_("v_lshl_add_u32", v(hT), v(hT + 1), 7, v(hT))
        b.v_("v_add_u32", v(hXa), s(sWoff), v(hT))
        for ks in range(1, 4): b.v_("v_xor_b32", v(hXa + ks), 32 * ks, v(hXa))
        b.s_("s_add_u32", s(sT2), s(sJ), s(sW))
        def zero_flags():
            for k in range(4): b.v_("v_mov_b32", v(hT + k), 0)
            b.store4(hT, hLin, sFL, 0, 0, " sc1")
        g.skip_if("s_cmp_lg_u32", s(sT2), 0, zero_flags)
        if g.o["prof"]:
            b.s_("s_mov_b32", "s84", "s100"); g.stamp(1); g.stamp(2)
        for p in range(8):
            for ks in range(4):
                b.v_("v_add_u32", v(hT + 4 + ks), R[p % 3], v(hXa + ks))
            b.v_("v_add_u32", v(hPoll), R[p % 3], v(hRa))
            g.stamp(3); g.stamp_commit(HP)
            b.barrier()
            g.stamp(0); g.stamp(1)
            for ks in range(4): b.ds_read128(XF + 16 * p + 4 * ks, hT + 4 + ks, 0)
            post = {}
            if p == g.o.get("kv0p", 1):
                post[0] = [lambda: g.h_k("kv0")]; post[4] = [lambda: g.h_v("kv0"), lambda: g.h_kv_adv(False)]
            if p == 4:
                def pub():
                    b.wait(vm=0)
                    b.v_("v_mov_b32", v(hT), 1)
                    b.store1(hT, hLin, sDBG, 0, 0, " sc1")
                post[8] = [lambda: g.skip_if("s_cmp_lg_u32", s(sT2), 0, pub)]
            if p == 6:
                def f():
                    b.s_("s_add_u32", s(sQh), s(sQh), 2048)
                    g.h_wq(0, LWQ, "wq0")
                post[0] = [f]; post[4] = [lambda: g.h_k("kv1")]; post[8] = [lambda: g.h_v("kv1"), lambda: g.h_kv_adv(False)]
            g.stream(g.mf_qp(p, hPoll, 16384), {}, post, None, False, HAF)
            g.stamp(2)
        g.h_cvtq()
        b.v_("v_add_u32", v(hRa), LWQ, v(hRa))
        b.s_("s_mov_b32", s(sStep), 0)
        b.wait(vm=8, lgkm=0)
        g.stamp(3); g.stamp_commit(HP)
        b.label("L_h_round")
        for i in range(8):
            b.hist = []
            b.barrier()
            g.stamp(0)
            def sloads_wq():
                def f():
                    if i == 7: b.s_("s_add_u32", s(sQh), s(sQh), 2048)
                    g.h_wq((i + 1) % 8, LWQ + ((i + 1) & 1) * 16384)
                g.skip_if("s_cmp_ge_u32", s(sRho), 3 if i < 7 else 2, f, "nowq")
            def sloads_wo():
                b.s_("s_add_u32", s(sStep), s(sStep), 1)
                b.v_("v_readlane_b32", s(sT1), v(hTbl), s(sStep))
                g.skip_if("s_cmp_ge_u32", s(sT1), BIG, lambda: g.h_wo(LWO + ((i + 1) & 1) * 16384), "nowo")
            def poll_issue():
                if i == 3:
                    b.s_("s_lshl_b32", s(sT3), s(sRho), 7)
                    b.s_("s_sub_u32", s(sT3), s(sT3), 128)
                    b.load1(hPoll, hFlagP, sFL, s(sT3), 0, " sc1")
                else:
                    b.v_("v_mov_b32", v(hT), 0)
                    b.load1(hPoll, hT, sDBG, 0, 0, " sc1")
            if i == 0:
                b.s_("s_add_u32", s(sT0), s(sFill), s(sWoff))
                b.v_("v_add_u32", v(hT), s(sT0), v(hLin))
                for f in range(8): b.ds_write128(hT, HAF + 4 * f, f * 1024)
                b.wait(lgkm=0)
                b.barrier()
            if i in (3, 5):
                if i == 3:
                    b.s_("s_cmp_eq_u32", s(sRho), 0)
                    b.s_("s_cselect_b32", s(sT2), 1, s(sW))
                else:
                    b.s_("s_add_u32", s(sT2), s(sRho), s(sW))
                g.skip_if("s_cmp_lg_u32", s(sT2), 0, poll_issue)
            order = g.o["order"]
            if order in ("dma_first", "split"): sloads_wq()
            if order == "dma_first": sloads_wo()
            if i == 0: b.barrier()
            if order == "inter":
                nq, dq = g.lab("noqp"), g.lab("qpdone")
                b.s_("s_cmp_ge_u32", s(sRho), 3)
                b.branch("s_cbranch_scc1", nq)
                post = {g.o.get("wqpos", 0): [sloads_wq], g.o.get("wopos", 5): [sloads_wo]}
                if g.o["midbar"]: post.setdefault(g.o.get("mbpos", 10), []).append(b.barrier)
                g.stream(g.mf_qp(i, hRa, (i & 1) * 16384), {}, post, None, False, HAF)
                if i == 7: g.h_cvtq()
                b.branch("s_branch", dq)
                b.label(nq)
                b.hist = []
                sloads_wo()
                if g.o["midbar"]: b.barrier()
                b.label(dq)
                b.hist = []
                g.stamp(1)
            else:
                def qp():
                    g.stream(g.mf_qp(i, hRa, (i & 1) * 16384), {}, {}, None, False, HAF)
                    if i == 7: g.h_cvtq()
                g.skip_if("s_cmp_ge_u32", s(sRho), 3, qp, "noqp")
                g.stamp(1)
                if order == "qp_first": sloads_wq()
                if order != "dma_first": sloads_wo()
                if g.o["midbar"]: b.barrier()
            if i in (4, 5):
                g.skip_if("s_cmp_lg_u32", s(sRho), 3, lambda: g.h_wo_t(i - 3), "notl")
            if i >= 6:
                nk, dn = g.lab("nokv"), g.lab("kvdone")
                b.s_("s_cmp_eq_u32", s(sRho), 3)
                b.branch("s_cbranch_scc1", nk)
            g.h_k(); g.h_v(); g.h_kv_adv(i == 5)
            g.stamp(2)
            b.wait(vm=8, lgkm=0)
            if i >= 6:
                b.branch("s_branch", dn)
                b.label(nk)
                b.hist = []
                if i == 6:
                    b.s_("s_mov_b32", s(sKVg), BIG)
                    g.h_v()
                    g.h_wo_t(3)
                    g.stamp(2)
                    b.wait(vm=8, lgkm=0)
                else:
                    g.h_wo_t(4); g.h_wo_t(5)
                    g.stamp(2)
                    b.wait(vm=0, lgkm=0)
                b.label(dn)
            if i in (3, 5):
                g.skip_if("s_cmp_lg_u32", s(sT2), 0, lambda: g.h_spin(poll_issue))
            g.stamp(3); g.stamp_commit(HP)
        b.s_("s_add_u32", s(sRho), s(sRho), 1)
        b.s_("s_cmp_lt_u32", s(sRho), 4)
        b.branch("s_cbranch_scc1", "L_h_round")
        b.barrier()
        g.stamp(0)
        g.h_wo_t(6); g.h_wo_t(7); g.h_wo_t(8)
        b.wait(vm=0)
        g.stamp(1)
        b.barrier()
        g.h_wo_t(9); g.h_wo_t(10)
        g.stamp(2)
        b.barrier()
        g.h_wo_t(11)
        b.wait(vm=0)
        g.stamp(3); g.stamp_commit(HP)
        b.barrier()
        if g.o["prof"]:
            b.other("s_getreg_b32 s84, hwreg(HW_REG_XCC_ID)")
            b.other("v_writelane_b32 v28, s84, 63")
            b.other("s_getreg_b32 s84, hwreg(HW_REG_HW_ID)")
            b.other("v_writelane_b32 v28, s84, 62")
        g.stamp_dump([28, 29, 30, 31], hT)
        b.label("L_end")
        b.other("s_endpgm")

    def build(g):
        b = g.b
        hdr = open("cdna_kernels/" + NAME + ".s.ref").read().split("; Override launch")[0]
        b.raw(hdr.rstrip())
        b.raw("; Generated by my own python generator: fused Qproj+attention+Oproj, 1 WG/CU, 4 attention + 4 helper waves")
        b.raw("; @launch grid=(256,1,1) block=(512,1,1) lds=163840")
        b.raw('.amdgcn_target "amdgcn-amd-amdhsa--gfx950"\n.text')
        b.raw(f".globl {NAME}_kernel\n.p2align 8\n.type {NAME}_kernel,@function\n{NAME}_kernel:")
        g.setup()
        g.attention()
        g.helper()
        b.raw('.section .rodata,"a"\n.p2align 6')
        b.raw(f".amdhsa_kernel {NAME}_kernel")
        b.raw("  .amdhsa_next_free_vgpr 256\n  .amdhsa_next_free_sgpr 102\n  .amdhsa_accum_offset 256\n  .amdhsa_group_segment_fixed_size 0\n  .amdhsa_kernarg_size 104\n  .amdhsa_user_sgpr_count 2\n  .amdhsa_user_sgpr_kernarg_segment_ptr 1\n  .amdhsa_system_sgpr_workgroup_id_x 1\n.end_amdhsa_kernel")
        return b.text()

if __name__ == "__main__":
    out = sys.argv[1] if len(sys.argv) > 1 else "k.s"
    opt = {}
    for a in sys.argv[2:]:
        k, x = a.split("=")
        try: x = eval(x)
        except Exception: pass
        opt[k] = x
    open(out, "w").write(Gen(**opt).build())
```
